```python
import torch

def _softmax(x, axis=-1):
    return torch.softmax(x, dim=axis)
def _gelu(x):
    return torch.nn.functional.gelu(x, approximate="tanh")
def _silu(x):
    return torch.nn.functional.silu(x)
def _sigmoid(x):
    return torch.sigmoid(x)
def _layernorm(x, axis=-1, eps=1e-5):
    m = x.mean(dim=axis, keepdim=True)
    v = x.var(dim=axis, keepdim=True, unbiased=False)
    return (x - m) / torch.sqrt(v + eps)
def _scatter_add(tgt, idx, src, axis=0):
    return tgt.clone().index_add_(axis, idx, src)
def _segment_sum(src, seg, n):
    out = torch.zeros((n,) + src.shape[1:], dtype=src.dtype)
    return out.index_add_(0, seg, src)
def _pad(x, pw):
    flat = tuple(v for pair in reversed(pw) for v in pair)
    return torch.nn.functional.pad(x, flat)

kernel_name = 'standalone__normalfloat_lut_af4__prompt'

def setup_inputs():

    _w = (lambda a: (lambda t: t.to(torch.bfloat16) if t.is_floating_point() else t)(torch.as_tensor(a)))
    B, S, D, F = 1, 2048, 1024, 3584
    G = -1 if -1 > 0 else D
    D = (D // G) * G
    ng = D // G
    nf4 = torch.tensor([
        -1.0, -0.6961928009986877, -0.5250730514526367, -0.39491748809814453,
        -0.28444138169288635, -0.18477343022823334, -0.09105003625154495, 0.0,
        0.07958029955625534, 0.16093020141124725, 0.24611230194568634,
        0.33791524171829224, 0.44070982933044434, 0.5626170039176941,
        0.7229568362236023, 1.0,
    ], dtype=float)
    qw = torch.randint(0, 16, (D, F)).to(torch.int64)
    return {
        "x": _w((lambda *s: torch.randn(*s, dtype=torch.bfloat16) * 0.05)(B, S, D)),
        "qw": _w(qw),
        "lut": _w(nf4),
        "scales": _w(torch.abs((lambda *s: torch.randn(*s, dtype=torch.bfloat16) * 0.05)(ng, F)).to(float) + 0.01),
    }

def reference(x, qw, lut, scales):
    B, S, D = x.shape
    ng, F = scales.shape
    G = D // ng
    deq = lut[qw]
    s = (lambda x, n, axis: torch.repeat_interleave(x, n, dim=axis))(scales, G, axis=0)
    w = (lambda x, dt: x.to(dt))(deq, x.dtype) * (lambda x, dt: x.to(dt))(s, x.dtype)
    return torch.einsum("bsd,df->bsf", x, w)
```

```python
NAME = "standalone__normalfloat_lut_af4__prompt"
HEADER = """; Kernarg layout for this problem (56 bytes, ptrs only, base s[0:1]):
"""
def kernel_text(label, body):
    return f""".globl {label}
.p2align 8
.type {label},@function
{label}:
{body}
s_endpgm
"""
def kd(label, vgpr, accum, sgpr=102, extra=""):
    return f""".p2align 6
.amdhsa_kernel {label}
  .amdhsa_next_free_vgpr {vgpr}
  .amdhsa_next_free_sgpr {sgpr}
  .amdhsa_accum_offset {accum}
  .amdhsa_group_segment_fixed_size 0
  .amdhsa_kernarg_size 56
  .amdhsa_user_sgpr_count 2
  .amdhsa_user_sgpr_kernarg_segment_ptr 1
  .amdhsa_system_sgpr_workgroup_id_x 1
{extra}.end_amdhsa_kernel
"""
def file_text(kernels, single=True):
    s = HEADER
    for k in kernels:
        kn = "" if single else f"kernel={k['label']} "
        s += f"; @launch {kn}grid=({k['grid']},1,1) block=({k['block']},1,1) lds={k['lds']}\n"
    s += '.amdgcn_target "amdgcn-amd-amdhsa--gfx950"\n.text\n'
    seen = []
    for k in kernels:
        if k['label'] in seen: continue
        seen.append(k['label']); s += kernel_text(k['label'], k['body'])
    s += '.section .rodata,"a"\n'
    seen = []
    for k in kernels:
        if k['label'] in seen: continue
        seen.append(k['label']); s += kd(k['label'], k['vgpr'], k['accum'], k.get('sgpr', 102), k.get('extra', ""))
    return s
```

```python
from common import *
import sys
def body_v0():
    L = []; a = L.append
    a("s_cmp_ge_u32 s2, 448"); a("s_cbranch_scc1 V0_END")
    a("s_load_dwordx4 s[4:7], s[0:1], 0"); a("s_load_dwordx4 s[8:11], s[0:1], 16"); a("s_load_dwordx2 s[12:13], s[0:1], 32")
    a("v_and_b32 v1, 15, v0"); a("v_lshrrev_b32 v2, 4, v0")
    a("v_lshlrev_b32 v3, 1, v1"); a("v_lshlrev_b32 v4, 1, v2")
    a("s_waitcnt lgkmcnt(0)")
    a("global_load_ushort v5, v3, s[8:9]"); a("global_load_ushort v6, v4, s[8:9]")
    a("s_mov_b32 s16, s4"); a("s_mov_b32 s17, s5"); a(f"s_mov_b32 s18, {2048*2048}"); a("s_mov_b32 s19, 0x20000")
    a("s_mov_b32 s20, s6"); a("s_mov_b32 s21, s7"); a(f"s_mov_b32 s22, {1024*14336}"); a("s_mov_b32 s23, 0x20000")
    a("s_mov_b32 s24, s12"); a("s_mov_b32 s25, s13"); a(f"s_mov_b32 s26, {2048*7168}"); a("s_mov_b32 s27, 0x20000")
    a("s_mov_b32 s28, s10"); a("s_mov_b32 s29, s11"); a(f"s_mov_b32 s30, 7168"); a("s_mov_b32 s31, 0x20000")
    a("s_and_b32 s32, s2, 7"); a("s_lshr_b32 s33, s2, 3")
    a("v_lshrrev_b32 v7, 6, v0")
    a("v_and_b32 v2, 3, v2")
    a("v_lshlrev_b32 v8, 6, v7"); a("v_add_u32 v8, v8, v1"); a("s_lshl_b32 s34, s32, 8"); a("v_add_u32 v8, s34, v8")
    a("v_lshlrev_b32 v8, 11, v8"); a("v_lshl_add_u32 v8, v2, 4, v8")
    for t in range(1, 4): a(f"v_add_u32 v{8+t}, {t*16*2048}, v8")
    a("v_mul_u32_u24 v12, 114688, v2"); a("v_lshl_add_u32 v12, v1, 4, v12"); a("s_lshl_b32 s35, s33, 8"); a("v_add_u32 v12, s35, v12")
    for j in range(1, 8): a(f"v_add_u32 v{12+j}, {j*14336}, v12")
    a("v_lshlrev_b32 v20, 3, v1"); a("s_lshl_b32 s36, s33, 7"); a("v_add_u32 v20, s36, v20")
    a("buffer_load_dwordx2 v[22:23], v20, s[28:31], 0 offen")
    a("v_lshlrev_b32 v21, 6, v7"); a("v_lshl_add_u32 v21, v2, 2, v21"); a("v_add_u32 v21, s34, v21")
    a("v_mul_u32_u24 v21, 7168, v21"); a("v_add_u32 v21, v21, v20")
    a("s_waitcnt vmcnt(1)")
    a("v_lshl_or_b32 v5, v6, 16, v5"); a("v_lshlrev_b32 v6, 2, v0"); a("ds_write_b32 v6, v5")
    for r in range(64): a(f"v_mov_b32 v{128+r}, 0")
    a("s_waitcnt lgkmcnt(0)"); a("s_barrier")
    a("s_mov_b32 s40, 0"); a("s_mov_b32 s41, 0")
    a("V0_LOOP:")
    for j in range(8): a(f"buffer_load_dwordx4 v[{32+4*j}:{35+4*j}], v{12+j}, s[20:23], s41 offen")
    for t in range(4): a(f"buffer_load_dwordx4 v[{64+4*t}:{67+4*t}], v{8+t}, s[16:19], s40 offen")
    a("s_waitcnt vmcnt(4)")
    for c in range(4):
        for jp in range(4):
            a(f"v_lshl_or_b32 v{96+c*4+jp}, v{32+4*(2*jp+1)+c}, 4, v{32+4*(2*jp)+c}")
            a(f"v_lshlrev_b32 v{96+c*4+jp}, 2, v{96+c*4+jp}")
            a(f"ds_read_b32 v{80+c*4+jp}, v{96+c*4+jp}")
        a("s_waitcnt lgkmcnt(0)")
    a("s_waitcnt vmcnt(0) lgkmcnt(0)")
    for t in range(4):
        for c in range(4):
            d = 128 + (t*4+c)*4
            a(f"v_mfma_f32_16x16x32_bf16 v[{d}:{d+3}], v[{64+4*t}:{67+4*t}], v[{80+4*c}:{83+4*c}], v[{d}:{d+3}]")
    a("s_add_u32 s40, s40, 64"); a(f"s_add_u32 s41, s41, {32*14336}")
    a("s_cmp_lt_u32 s40, 2048"); a("s_cbranch_scc1 V0_LOOP")
    a("s_nop 7"); a("s_nop 7")
    a("v_lshlrev_b32 v24, 16, v22"); a("v_and_b32 v25, 0xffff0000, v22"); a("v_lshlrev_b32 v26, 16, v23"); a("v_and_b32 v27, 0xffff0000, v23")
    for t in range(4):
        for r in range(4):
            for c in range(4):
                d = 128 + (t*4+c)*4 + r
                a(f"v_mul_f32 v{d}, v{d}, v{24+c}")
            q = 32 + 2*(t*4+r)
            a(f"v_cvt_pk_bf16_f32 v{q}, v{128+(t*4+0)*4+r}, v{128+(t*4+1)*4+r}")
            a(f"v_cvt_pk_bf16_f32 v{q+1}, v{128+(t*4+2)*4+r}, v{128+(t*4+3)*4+r}")
            a(f"s_mov_b32 s42, {(t*16+r)*7168}")
            a(f"buffer_store_dwordx2 v[{q}:{q+1}], v21, s[24:27], s42 offen")
    a("V0_END:")
    return "\n".join(L)
K0 = dict(label=NAME+"_kernel", body=body_v0(), grid=448, block=256, lds=1024, vgpr=192, accum=192)
if __name__ == "__main__":
    open(sys.argv[1], "w").write(file_text([K0]))
```

```python
from common import *
from v0 import K0
import sys
def probe_lat(slot, n, stride, size):
    L = []; a = L.append
    a("s_cmp_ge_u32 s2, 1"); a("s_cbranch_scc1 P_END")
    a(f"s_load_dwordx2 s[4:5], s[0:1], {slot*8}")
    a("v_mov_b32 v1, 0")
    a("s_waitcnt lgkmcnt(0)")
    a(f"s_mov_b32 s6, {size}"); a("s_mov_b32 s7, 0x20000")
    a("s_mov_b32 s8, 0")
    if n:
        a("P_LOOP:")
        a("buffer_load_dword v2, v1, s[4:7], s8 offen")
        a("s_waitcnt vmcnt(0)")
        a(f"s_add_u32 s8, s8, {stride}"); a(f"s_cmp_lt_u32 s8, {n*stride}"); a("s_cbranch_scc1 P_LOOP")
    a("P_END:")
    return dict(label="probe_kernel", body="\n".join(L), grid=1, block=64, lds=0, vgpr=8, accum=8)
import os
os.makedirs("tmp", exist_ok=True)
open("p_empty.s", "w").write(file_text([probe_lat(0, 0, 0, 64), K0], single=False))
open("p_x.s", "w").write(file_text([probe_lat(0, 400, 8192+128, 2048*2048), K0], single=False))
open("p_qw.s", "w").write(file_text([probe_lat(1, 400, 32768+128, 1024*14336), K0], single=False))
open("p_out.s", "w").write(file_text([probe_lat(4, 400, 32768+128, 2048*7168), K0], single=False))
open("p_ws.s", "w").write(file_text([probe_lat(6, 400, 524288+128, 1<<28), K0], single=False))
open("p_v0.s", "w").write(file_text([K0], single=False))
```

```python
from common import *
from v0 import K0
import sys
def probe_stream(per_wg, write=False, flags="", grid=256):
    L = []; a = L.append
    a(f"s_cmp_ge_u32 s2, {grid}"); a("s_cbranch_scc1 P_END")
    a(f"s_load_dwordx2 s[4:5], s[0:1], 48")
    a("v_lshlrev_b32 v1, 4, v0")
    for r in range(8, 12): a(f"v_mov_b32 v{r}, 0")
    a("s_waitcnt lgkmcnt(0)")
    a(f"s_mov_b32 s6, {1<<28}"); a("s_mov_b32 s7, 0x20000")
    a(f"s_mul_i32 s8, s2, {per_wg}"); a(f"s_add_u32 s9, s8, {per_wg}")
    a("P_LOOP:")
    for j in range(8):
        if write: a(f"buffer_store_dwordx4 v[8:11], v1, s[4:7], s8 offen {flags}")
        else: a(f"buffer_load_dwordx4 v[{8+4*j}:{11+4*j}], v1, s[4:7], s8 offen {flags}")
        a(f"s_add_u32 s8, s8, 4096")
        if not write: a("s_waitcnt vmcnt(7)")
    a(f"s_cmp_lt_u32 s8, s9"); a("s_cbranch_scc1 P_LOOP")
    a("s_waitcnt vmcnt(0)")
    a("P_END:")
    return dict(label="probe_kernel", body="\n".join(L), grid=grid, block=256, lds=81920+1024, vgpr=64, accum=64)
open("q_r16.s", "w").write(file_text([probe_stream(65536), K0], single=False))
open("q_r64.s", "w").write(file_text([probe_stream(262144), K0], single=False))
open("q_r16nt.s", "w").write(file_text([probe_stream(65536, flags="nt"), K0], single=False))
open("q_w16.s", "w").write(file_text([probe_stream(65536, True), K0], single=False))
open("q_w64.s", "w").write(file_text([probe_stream(262144, True), K0], single=False))
open("q_w16nt.s", "w").write(file_text([probe_stream(65536, True, flags="nt"), K0], single=False))
open("q_aw16.s", "w").write(file_text([K0, probe_stream(65536, True)], single=False))
open("q_aw16nt.s", "w").write(file_text([K0, probe_stream(65536, True, flags="nt")], single=False))
open("q_aw16sc.s", "w").write(file_text([K0, probe_stream(65536, True, flags="sc0 sc1")], single=False))
open("q_ar16.s", "w").write(file_text([K0, probe_stream(65536)], single=False))
open("q_ar8.s", "w").write(file_text([K0, probe_stream(32768)], single=False))
from probe import probe_lat
open("q_aempty.s", "w").write(file_text([K0, probe_lat(0,0,0,64)], single=False))
```

```python
from common import *
import sys

M, K, N = 2048, 1024, 3584
A_ST = 32768
B_BASE = 3 * A_ST
B_ST = 16384
LUT_BASE = B_BASE + 2 * B_ST
LDS = LUT_BASE + 32768

class E:
    def __init__(s): s.L = []
    def __call__(s, *xs):
        for x in xs: s.L.append(x)
    def text(s): return "\n".join(s.L)

def interleave(main, fill, pattern):
    out = []; j = 0
    for i, m in enumerate(main):
        out.append(m)
        n = pattern[i] if i < len(pattern) else 0
        out += fill[j:j+n]; j += n
    out += fill[j:]
    return out

def gen(diag=False, helper=None, store_flags="nt", cprio=0, pprio=0, nmain_first=True):
    a = E()
    sX, sQ, sO, sS = 20, 24, 28, 32
    def srd(r): return f"s[{r}:{r+3}]"
    nwg = 256 if helper else 224
    def stamp(idx):
        if diag: a(f"s_memrealtime s[{60+2*idx}:{61+2*idx}]")
    stamp(0)
    a(f"s_cmp_ge_u32 s2, {nwg}", "s_cbranch_scc1 L_END")
    a("s_load_dwordx4 s[4:7], s[0:1], 0", "s_load_dwordx4 s[8:11], s[0:1], 16", "s_load_dwordx2 s[12:13], s[0:1], 32")
    if diag: a("s_load_dwordx2 s[16:17], s[0:1], 48")
    a("v_lshrrev_b32 v1, 6, v0", "v_and_b32 v0, 63, v0")
    a("s_and_b32 s40, s2, 7", "s_lshr_b32 s41, s2, 3")
    a("v_readfirstlane_b32 s36, v1")
    if helper:
        a("s_sub_u32 s41, s41, 4")
    a("s_lshr_b32 s42, s40, 2", "s_and_b32 s43, s40, 3")
    a("s_and_b32 s37, s41, 3", "s_lshl2_add_u32 s37, s42, s37")
    a("s_lshr_b32 s38, s41, 2", "s_mul_i32 s44, s43, 7", "s_add_u32 s38, s38, s44")
    a(f"s_mov_b32 s{sX+2}, {M*K*2}", f"s_mov_b32 s{sX+3}, 0x20000")
    a(f"s_mov_b32 s{sQ+2}, {K*N*4}", f"s_mov_b32 s{sQ+3}, 0x20000")
    if helper:
        a("s_cmp_ge_u32 s41, 28", "s_cbranch_scc1 L_HELPER")
    a("s_cmp_ge_u32 s36, 4", "s_cbranch_scc1 L_PROD")

    ACC = 128; F0 = 64; F1 = 88
    vAb, vA, vB, vO, vSc = 8, 12, 16, 17, 18
    if cprio: a(f"s_setprio {cprio}")
    a("v_lshrrev_b32 v2, 3, v0", "v_lshlrev_b32 v2, 1, v2")
    a("v_and_b32 v3, 15, v0", "v_bfe_u32 v4, v0, 4, 1", "v_lshrrev_b32 v5, 5, v0")
    a("s_lshl_b32 s45, s38, 8")
    a("v_lshl_add_u32 v6, v3, 4, s45")
    a("v_lshl_add_u32 v7, v4, 3, v6")
    a("s_lshl_b32 s46, s36, 3")
    a("s_waitcnt lgkmcnt(0)")
    a("global_load_ushort v24, v2, s[8:9]", "global_load_ushort v25, v2, s[8:9] offset:16")
    a("s_load_dwordx2 s[48:49], s[8:9], s46")
    a(f"global_load_dwordx2 v[{vSc}:{vSc+1}], v7, s[10:11]")
    a(f"s_mov_b32 s{sO}, s12", f"s_mov_b32 s{sO+1}, s13", f"s_mov_b32 s{sO+2}, {M*N*2}", f"s_mov_b32 s{sO+3}, 0x20000")
    a("s_lshl_b32 s47, s37, 2", "s_add_u32 s47, s47, s36", "s_lshl_b32 s47, s47, 6")
    a("v_lshl_add_u32 v26, v5, 2, v4", "v_add_u32 v26, s47, v26", "v_mul_u32_u24 v26, 7168, v26", f"v_add_u32 v{vO}, v26, v6")
    a("v_and_b32 v26, 31, v0", "s_lshl_b32 s47, s36, 6", "v_add_u32 v26, s47, v26", "v_lshlrev_b32 v26, 7, v26")
    a("v_bfe_u32 v27, v0, 1, 3", "v_xor_b32 v27, v27, v5", f"v_lshl_add_u32 v{vAb}, v27, 4, v26")
    for ks in range(1, 4): a(f"v_xor_b32 v{vAb+ks}, {ks<<5}, v{vAb}")
    for ks in range(4): a(f"v_mov_b32 v{vA+ks}, v{vAb+ks}")
    a("v_lshl_add_u32 v26, v3, 1, v4", "v_lshlrev_b32 v26, 4, v26", "v_lshl_add_u32 v26, v5, 11, v26", f"v_add_u32 v{vB}, {B_BASE}, v26")
    for r in range(4): a(f"v_mov_b32 v{F0+r}, 0")
    a("s_nop 1")
    for t in range(8): a(f"v_mfma_f32_32x32x16_bf16 v[{ACC+16*t}:{ACC+16*t+15}], v[{F0}:{F0+3}], v[{F0}:{F0+3}], 0")
    a("s_lshl_b32 s47, s36, 13", f"s_add_u32 s47, s47, {LUT_BASE}", "v_lshl_add_u32 v27, v0, 4, s47")
    a("s_waitcnt vmcnt(1) lgkmcnt(0)")
    a("s_lshl_b32 s50, s48, 16", "s_and_b32 s51, s48, 0xffff0000", "s_lshl_b32 s52, s49, 16", "s_and_b32 s53, s49, 0xffff0000")
    for j in range(8):
        q = 28 + 4 * j
        for r in range(4): a(f"v_or_b32 v{q+r}, s{50+j//2}, v{24+j%2}")
        a(f"ds_write_b128 v27, v[{q}:{q+3}] offset:{j*1024}")
    a("s_waitcnt lgkmcnt(0)", "s_barrier")
    def reads(ks, F):
        r = []
        r.append(f"ds_read_b128 v[{F}:{F+3}], v{vA+ks}")
        for c in range(4):
            r.append(f"ds_read_b128 v[{F+8+4*c}:{F+11+4*c}], v{vB} offset:{ks*4096+c*512}")
            if c == 0: r.append(f"ds_read_b128 v[{F+4}:{F+7}], v{vA+ks} offset:4096")
        return r
    def mfmas(F):
        r = []
        for c in range(4):
            for m2 in range(2):
                d = ACC + (m2*4 + c) * 16
                r.append(f"v_mfma_f32_32x32x16_bf16 v[{d}:{d+15}], v[{F+4*m2}:{F+4*m2+3}], v[{F+8+4*c}:{F+11+4*c}], v[{d}:{d+15}]")
        return r
    PAT = [2, 2, 2]
    a("s_mov_b32 s54, 0", "s_mov_b32 s55, 0")
    a("s_barrier")
    stamp(1)
    a(*reads(0, F0))
    a("s_branch L_CENTRY")
    a("L_CLOOP:")
    a("s_barrier")
    a(*interleave(mfmas(F1), reads(0, F0), PAT))
    a("L_CENTRY:")
    a("s_waitcnt lgkmcnt(0)")
    a(*interleave(mfmas(F0), reads(1, F1), PAT))
    a("s_waitcnt lgkmcnt(0)")
    a(*interleave(mfmas(F1), reads(2, F0), PAT))
    a("s_waitcnt lgkmcnt(0)")
    upd = [f"s_add_u32 s55, s55, {A_ST}", f"s_cmp_eq_u32 s55, {3*A_ST}", "s_cselect_b32 s55, 0, s55"] + \
          [f"v_add_u32 v{vA+ks}, s55, v{vAb+ks}" for ks in range(4)] + [f"v_xor_b32 v{vB}, {B_ST}, v{vB}"] + \
          ["s_add_u32 s54, s54, 1"]
    if diag:
        upd = ["s_memtime s[58:59]"] + upd
    a(*interleave(mfmas(F0), reads(3, F1) + upd, [2, 2, 2, 3, 3, 3, 3]))
    a("s_waitcnt lgkmcnt(0)")
    if diag:
        a("s_mov_b32 m0, s54", "s_nop 3", "v_writelane_b32 v60, s58, m0")
    a("s_cmp_lt_u32 s54, 16", "s_cbranch_scc1 L_CLOOP")
    a(*mfmas(F1))
    stamp(2)
    a("s_waitcnt vmcnt(0)")
    a(f"v_lshlrev_b32 v20, 16, v{vSc}", f"v_and_b32 v21, 0xffff0000, v{vSc}", f"v_lshlrev_b32 v22, 16, v{vSc+1}", f"v_and_b32 v23, 0xffff0000, v{vSc+1}")
    a("s_nop 7", "s_nop 1")
    n = 0
    for m2 in range(2):
        for r in range(0, 16, 2):
            q = 64 + 4 * (n % 8); n += 1
            for c in range(4):
                d = ACC + (m2*4 + c) * 16 + r
                sc = 20 + (c & ~1)
                sel = "op_sel:[0,1] op_sel_hi:[1,1]" if c & 1 else "op_sel:[0,0] op_sel_hi:[1,0]"
                a(f"v_pk_mul_f32 v[{d}:{d+1}], v[{d}:{d+1}], v[{sc}:{sc+1}] {sel}")
            for rr in range(2):
                for h in range(2):
                    a(f"v_cvt_pk_bf16_f32 v{q+2*rr+h}, v{ACC+(m2*4+2*h)*16+r+rr}, v{ACC+(m2*4+2*h+1)*16+r+rr}")
            a(f"s_mov_b32 s56, {(32*m2 + 8*(r//4) + r%4) * 7168}")
            a("s_nop 0")
            a(f"v_permlane16_swap_b32 v{q}, v{q+2}", f"v_permlane16_swap_b32 v{q+1}, v{q+3}")
            a(f"buffer_store_dwordx4 v[{q}:{q+3}], v{vO}, {srd(sO)}, s56 offen {store_flags}")
    if diag:
        stamp(3)
        a("s_waitcnt vmcnt(0)")
        stamp(4)
        a("s_branch L_DIAG")
    a("s_endpgm")

    a("L_PROD:")
    if pprio: a(f"s_setprio {pprio}")
    vAo, vBo, R0, R1, W, vL, vW = 8, 16, 32, 64, 96, 24, 25
    R = [R0, R1]
    a("s_sub_u32 s39, s36, 4")
    a("v_lshrrev_b32 v5, 5, v0", "v_and_b32 v3, 31, v0")
    a("s_mul_i32 s45, s39, %d" % (16*14336), "s_lshl_b32 s46, s38, 9", "s_add_u32 s45, s45, s46")
    a("v_mul_u32_u24 v2, %d, v5" % (8*14336), "v_lshl_add_u32 v2, v3, 4, v2", f"v_add_u32 v{vBo}, s45, v2")
    for j in range(1, 8): a(f"v_add_u32 v{vBo+j}, {j*14336}, v{vBo}")
    a("s_mov_b32 s50, 0", "s_mov_b32 s51, 0")
    a("s_waitcnt lgkmcnt(0)")
    a(f"s_mov_b32 s{sQ}, s6", f"s_mov_b32 s{sQ+1}, s7", f"s_mov_b32 s{sX}, s4", f"s_mov_b32 s{sX+1}, s5")
    def bloads(u): return [f"buffer_load_dwordx4 v[{R[u]+4*j}:{R[u]+4*j+3}], v{vBo+j}, {srd(sQ)}, s50 offen" for j in range(8)]
    a(*bloads(0))
    a("s_lshl_b32 s45, s37, 2", "s_add_u32 s45, s45, s39", "s_lshl_b32 s45, s45, 17")
    a("v_lshrrev_b32 v2, 3, v0", "v_lshl_add_u32 v2, v2, 11, s45")
    a("v_and_b32 v4, 7, v0", "v_lshrrev_b32 v6, 4, v0", "v_xor_b32 v4, v4, v6", "v_lshl_add_u32 v2, v4, 4, v2")
    a("v_xor_b32 v4, 64, v2")
    for j in range(8): a(f"v_add_u32 v{vAo+j}, {j*16384 - (j&3)*1024}, v{4 if j&1 else 2}")
    a("s_lshl_b32 s52, s39, 13")
    a("s_mov_b32 s53, s52")
    def admas():
        r = []
        for j in range(8):
            pre = []
            if j == 0: pre = ["s_mov_b32 m0, s52", "s_nop 0"]
            if j == 4: pre = ["s_add_u32 m0, s52, 4096", "s_nop 0"]
            r.append("\n".join(pre + [f"buffer_load_dwordx4 v{vAo+j}, {srd(sX)}, s51 offen offset:{(j&3)*1024} lds"]))
        return r
    adv = [f"s_add_u32 s50, s50, {64*14336}", "s_add_u32 s51, s51, 128",
           f"s_add_u32 s52, s52, {A_ST}", f"s_cmp_ge_u32 s52, {3*A_ST}", "s_cselect_b32 s52, s53, s52"]
    a(*admas()); a(*adv)
    a(*bloads(1)); a(*admas()); a(*adv)
    a(f"v_lshlrev_b32 v{vL}, 2, v3", f"v_add_u32 v{vL}, {LUT_BASE}, v{vL}")
    a("s_lshl_b32 s45, s39, 12", f"s_add_u32 s45, s45, {B_BASE}")
    a("v_lshlrev_b32 v2, 4, v3", "v_lshl_add_u32 v2, v5, 11, v2", f"v_add_u32 v{vW}, s45, v2")
    def dequant(u):
        r = []
        def rd(c):
            for jp in range(4):
                w = W + 4*c + jp
                r.append(f"v_lshl_or_b32 v{w}, v{R[u]+4*(2*jp+1)+c}, 4, v{R[u]+4*(2*jp)+c}")
                r.append(f"v_lshl_add_u32 v{w}, v{w}, 7, v{vL}")
                r.append(f"ds_read_b32 v{w}, v{w}")
        def wr(c, n):
            r.append(f"s_waitcnt lgkmcnt({n})\nds_write_b128 v{vW}, v[{W+4*c}:{W+4*c+3}] offset:{c*512}")
        rd(0); rd(1); wr(0, 4); rd(2); wr(1, 5); rd(3); wr(2, 5); wr(3, 1)
        r.append(f"v_xor_b32 v{vW}, {B_ST}, v{vW}")
        return r
    a("s_barrier")
    a("s_waitcnt vmcnt(24)")
    a(*dequant(0))
    a("s_mov_b32 s54, 0")
    a("s_waitcnt vmcnt(16) lgkmcnt(0)")
    a("L_PLOOP:")
    for u in range(2):
        a("s_barrier")
        a("s_waitcnt vmcnt(8)")
        a(*interleave(bloads(u) + admas(), dequant(1-u), [4]*16))
        a(*adv)
        if u == 1: a("s_add_u32 s54, s54, 2", "s_cmp_lt_u32 s54, 14")
        a("s_waitcnt vmcnt(16) lgkmcnt(0)")
    a("s_cbranch_scc1 L_PLOOP")
    a("s_barrier")
    a("s_waitcnt vmcnt(8)")
    a(*dequant(1))
    a("s_waitcnt vmcnt(0) lgkmcnt(0)")
    a("s_barrier")
    a("s_endpgm")

    if helper:
        a("L_HELPER:")
        helper(a)
        a("s_endpgm")

    if diag:
        a("L_DIAG:")
        a("s_waitcnt lgkmcnt(0)")
        for i in range(5): a(f"v_writelane_b32 v60, s{60+2*i}, {32+i}")
        a("s_getreg_b32 s58, hwreg(HW_REG_XCC_ID)", "s_nop 3", "v_writelane_b32 v60, s58, 40")
        a("s_lshl_b32 s58, s2, 2", "s_add_u32 s58, s58, s36", "s_lshl_b32 s58, s58, 8")
        a("v_lshl_add_u32 v61, v0, 2, s58")
        a("global_store_dword v61, v60, s[16:17]")
        a("s_waitcnt vmcnt(0)")
    a("L_END:")
    return dict(label=NAME+"_kernel", body=a.text(), grid=nwg, block=512, lds=LDS, vgpr=256, accum=256)

if __name__ == "__main__":
    kw = eval("dict(" + (sys.argv[2] if len(sys.argv) > 2 else "") + ")")
    open(sys.argv[1], "w").write(file_text([gen(**kw)]))
```

```python
from common import *
import v1
K1 = v1.gen()
def spin(us, grid=256, busy=False):
    L = []; a = L.append
    a(f"s_cmp_ge_u32 s2, {grid}"); a("s_cbranch_scc1 P_END")
    a("s_memrealtime s[4:5]"); a("s_waitcnt lgkmcnt(0)")
    a("P_LOOP:")
    if busy:
        for i in range(32): a(f"v_fma_f32 v{1+i%4}, v{1+i%4}, v0, v0")
    a("s_memrealtime s[6:7]"); a("s_waitcnt lgkmcnt(0)")
    a("s_sub_u32 s8, s6, s4"); a(f"s_cmp_lt_u32 s8, {us*100}"); a("s_cbranch_scc1 P_LOOP")
    a("P_END:")
    return dict(label="probe_kernel", body="\n".join(L), grid=grid, block=256, lds=0, vgpr=8, accum=8)
def tlb(grid=256, stride=65536):
    L = []; a = L.append
    a(f"s_cmp_ge_u32 s2, {grid}"); a("s_cbranch_scc1 P_END")
    a("s_load_dwordx4 s[4:7], s[0:1], 0"); a("s_load_dwordx2 s[12:13], s[0:1], 32")
    a(f"s_mov_b32 s20, {stride}"); a("v_mul_lo_u32 v1, v0, s20")
    a("s_waitcnt lgkmcnt(0)")
    a("s_mov_b32 s8, s6"); a("s_mov_b32 s9, s7"); a(f"s_mov_b32 s10, {1024*14336}"); a("s_mov_b32 s11, 0x20000")
    a(f"s_mov_b32 s6, {2048*2048}"); a("s_mov_b32 s7, 0x20000")
    a(f"s_mov_b32 s14, {2048*7168}"); a("s_mov_b32 s15, 0x20000")
    a("buffer_load_dword v2, v1, s[4:7], 0 offen"); a("buffer_load_dword v3, v1, s[8:11], 0 offen"); a("buffer_load_dword v4, v1, s[12:15], 0 offen")
    a("s_waitcnt vmcnt(0)")
    a("P_END:")
    return dict(label="probe_kernel", body="\n".join(L), grid=grid, block=256, lds=0, vgpr=8, accum=8)
W = lambda n, ks: open(f"tmp/{n}.s", "w").write(file_text(ks, single=False))
W("r_a", [K1]); W("r_b", [K1, K1]); W("r_c", [tlb(), K1]); W("r_d", [spin(20), K1]); W("r_e", [spin(20, busy=True), K1]); W("r_f", [spin(0), K1])
W("r_g", [K1, K1, K1]); W("r_h", [spin(20, grid=1), K1]); W("r_i", [K1, spin(20)])
```

```python
class I:
    def __init__(s, text, kind="x", tag=None, need=()):
        s.text = text; s.kind = kind; s.tag = tag; s.need = tuple(need)
def lds(text, tag=None, need=()): return I(text, "lds", tag, need)
def vm(text, tag=None, need=()): return I(text, "vm", tag, need)
def op(text, need=()): return I(text, "x", None, need)
def wait(l=None, v=None):
    w = I("", "wait"); w.l = l; w.v = v; return w

def resolve(seq, prev=None, check=True):
    hist = {"lds": [], "vm": []}; done = {"lds": 0, "vm": 0}
    def run(sq, emit):
        out = []
        for x in sq:
            if x.kind == "wait":
                parts = []
                for k, t, nm, mx in (("vm", x.v, "vmcnt", 63), ("lds", x.l, "lgkmcnt", 15)):
                    if t is None: continue
                    h = hist[k]
                    if t == "all": n = 0
                    else:
                        idx = [i for i, y in enumerate(h) if y == t]
                        if not idx:
                            assert not emit, f"wait on unknown tag {t}"
                            continue
                        n = len(h) - 1 - idx[-1]
                    n = min(n, mx)
                    done[k] = max(done[k], len(h) - n)
                    parts.append(f"{nm}({n})")
                if parts: out.append("s_waitcnt " + " ".join(parts))
                continue
            if emit and check:
                for t in x.need:
                    found = False
                    for k in hist:
                        idx = [i for i, y in enumerate(hist[k]) if y == t]
                        if idx:
                            found = True
                            assert idx[-1] < done[k], f"'{x.text}' needs {t} which is not waited for"
                    assert found, f"'{x.text}' needs unknown tag {t}"
            if x.kind in hist: hist[x.kind].append(x.tag)
            out.append(x.text)
        return out
    if prev: run(prev, False)
    return run(seq, True)

def place(mf, slots):
    out = list(slots.get(-1, []))
    for i, m in enumerate(mf):
        out.append(m); out += slots.get(i, [])
    return out
```

```python
from common import *
from sched import *
import sys

M, K, N = 2048, 1024, 3584
A_ST = 0x8000; B_BASE = 0x10000; B_ST = 0x4000; LUT_BASE = 0x18000; LDS = 0x20000

class E:
    def __init__(s): s.L = []
    def __call__(s, *xs):
        for x in xs: s.L.append(x)
    def text(s): return "\n".join(s.L)

class Gaps:
    def __init__(s, n=64):
        s.n = n; s.sc = [[] for _ in range(n)]; s.mem = [[] for _ in range(n)]; s.va = [[] for _ in range(n)]
        s.nods = set(); s.full = set()
    def used(s, g): return len(s.mem[g]) + len(s.va[g]) + max(0, len(s.sc[g]) - 1)
    def put(s, cls, x, target, hi=None):
        g = target
        while True:
            assert g < s.n and (hi is None or g <= hi), f"cannot place {x.text or 'wait'} in [{target},{hi}]"
            if cls == "sc": ok = len(s.sc[g]) == 0
            elif cls == "wr": ok = s.used(g) == 0
            elif cls == "ds": ok = g not in s.full and g not in s.nods and s.used(g) < 2 and not any(y.kind == "lds" for y in s.mem[g])
            else: ok = g not in s.full and s.used(g) < 2
            if ok: break
            g += 1
        if cls == "sc": s.sc[g].append(x)
        elif cls == "va": s.va[g].append(x)
        else: s.mem[g].append(x)
        if cls == "wr": s.full.add(g)
        return g
    def slots(s): return {g: s.sc[g] + s.mem[g] + s.va[g] for g in range(s.n)}

def helper_h2(a, s0=1, full=False, flags=""):
    a("s_add_u32 s41, s41, 4", "s_lshl2_add_u32 s41, s41, s36")
    a("v_min_u32 v2, 55, v0", "v_cmp_lt_u32 vcc, 27, v2", "v_lshlrev_b32 v2, 7, v2", f"v_mov_b32 v3, {14336 - 28*128}", "v_cndmask_b32 v3, 0, v3, vcc", "v_add_u32 v2, v2, v3")
    a("s_lshl_b32 s45, s42, 4", "s_add_u32 s45, s45, s41", f"s_mul_i32 s45, s45, {2*14336}", "s_mul_i32 s46, s43, 3584", "s_add_u32 s45, s45, s46", "v_add_u32 v2, s45, v2")
    a("v_lshrrev_b32 v3, 2, v0", "v_and_b32 v4, 3, v0", "v_lshlrev_b32 v3, 11, v3", "v_lshl_add_u32 v3, v4, 7, v3")
    a("s_lshl2_add_u32 s45, s42, s43", "s_lshl4_add_u32 s45, s45, s41", "s_lshl_b32 s45, s45, 15", "v_add_u32 v3, s45, v3")
    a("s_waitcnt lgkmcnt(0)")
    a("s_mov_b32 s24, s6", "s_mov_b32 s25, s7", "s_mov_b32 s20, s4", "s_mov_b32 s21, s5")
    n = 8
    for s in range(16):
        if s % 4 == 0:
            a(f"buffer_load_dword v{n}, v3, s[20:23], 0 offen offset:{(s//4)*512} {flags}"); n += 1
        if s >= s0:
            a(f"s_mov_b32 s50, {s*64*14336}")
            a(f"buffer_load_dword v{n}, v2, s[24:27], s50 offen {flags}"); n += 1
    a("s_waitcnt vmcnt(0)")

def gen(diag=0, helper=None, store_flags="nt", exp="", phi=43, om=42, wrs=4, quiet=3, lpos=(59, 8, 18, 27), olead=(7, 5, 5, 5), lstr=(1, 2, 2, 2)):
    a = E()
    sX, sQ, sO = 20, 24, 28
    def srd(r): return f"s[{r}:{r+3}]"
    nwg = 256 if helper else 224
    def stamp(idx):
        if diag:
            a(f"s_memrealtime s[{60+2*idx}:{61+2*idx}]")
            if idx in (1, 2): a(f"s_memtime s[{70+2*idx}:{71+2*idx}]")
    ACC = 128; R = 32; RP = 64; W = 96; T = 120
    NM, NN, AW = 4, 8, 4
    FSZ = 48; F = [0, FSZ]
    vAo, vBo, vA, vB, vO, vL, vW, vSc = 8, 16, 24, 26, 28, 29, 30, 112
    vp = [(phi + 4 * i) for i in range(16)]
    nhead = sum(1 for i in range(8) if vp[i] < 64)
    assert vp[8] >= 64
    stamp(0)
    a(f"s_cmp_ge_u32 s2, {nwg}", "s_cbranch_scc1 L_END")
    a("s_load_dwordx4 s[4:7], s[0:1], 0", "s_load_dwordx4 s[8:11], s[0:1], 16", "s_load_dwordx2 s[12:13], s[0:1], 32")
    if diag: a("s_load_dwordx2 s[16:17], s[0:1], 48")
    a("v_lshrrev_b32 v1, 6, v0", "v_and_b32 v0, 63, v0")
    a("s_and_b32 s40, s2, 7", "s_lshr_b32 s41, s2, 3")
    a("v_readfirstlane_b32 s36, v1")
    if helper: a("s_sub_u32 s41, s41, 4")
    a("s_lshr_b32 s42, s40, 2", "s_and_b32 s43, s40, 3")
    a("s_and_b32 s37, s41, 3", "s_lshl2_add_u32 s37, s42, s37")
    a("s_lshr_b32 s38, s41, 2", "s_mul_i32 s44, s43, 7", "s_add_u32 s38, s38, s44")
    a(f"s_mov_b32 s{sX+2}, {M*K*2}", f"s_mov_b32 s{sX+3}, 0x20000")
    a(f"s_mov_b32 s{sQ+2}, {K*N*4}", f"s_mov_b32 s{sQ+3}, 0x20000")
    if helper: a("s_cmp_ge_u32 s41, 28", "s_cbranch_scc1 L_HELPER")
    a("v_lshrrev_b32 v5, 5, v0", "v_and_b32 v3, 31, v0")
    a("s_mul_i32 s45, s36, %d" % (16*14336), "s_lshl_b32 s46, s38, 9", "s_add_u32 s45, s45, s46")
    a("v_mul_u32_u24 v2, %d, v5" % (8*14336), "v_lshl_add_u32 v2, v3, 4, v2", f"v_add_u32 v{vBo}, s45, v2")
    for j in range(1, 8): a(f"v_add_u32 v{vBo+j}, {j*14336}, v{vBo}")
    a("v_lshrrev_b32 v6, 3, v0", "v_lshlrev_b32 v2, 1, v6", "s_lshl_b32 s46, s36, 3")
    a("s_mov_b32 s50, 0", "s_mov_b32 s51, 0")
    a("s_waitcnt lgkmcnt(0)")
    a(f"s_mov_b32 s{sQ}, s6", f"s_mov_b32 s{sQ+1}, s7", f"s_mov_b32 s{sX}, s4", f"s_mov_b32 s{sX+1}, s5")
    P = []
    P += [vm("global_load_ushort v116, v2, s[8:9]"), vm("global_load_ushort v117, v2, s[8:9] offset:16", "lut")]
    P += [op("s_load_dwordx2 s[48:49], s[8:9], s46")]
    def bload(j, r=R): return vm(f"buffer_load_dwordx4 v[{r+4*j}:{r+4*j+3}], v{vBo+j}, {srd(sQ)}, s50 offen", f"B{j}" if r == R else f"P{j}")
    def adma(j, need=()): return vm(f"buffer_load_dwordx4 v{vAo+j}, {srd(sX)}, s51 offen offset:{(j&3)*1024} lds", f"A{j}", need)
    P += [bload(j, RP) for j in range(8)]
    P += [op(x) for x in ["s_lshl_b32 s45, s37, 2", "s_add_u32 s45, s45, s36", "s_lshl_b32 s45, s45, 17",
          "v_lshl_add_u32 v2, v6, 11, s45", "v_and_b32 v4, 7, v0", "v_lshrrev_b32 v6, 4, v0", "v_xor_b32 v4, v4, v6",
          "v_lshl_add_u32 v2, v4, 4, v2", "v_xor_b32 v4, 64, v2"]]
    P += [op(f"v_add_u32 v{vAo+j}, {j*16384 - (j&3)*1024}, v{4 if j&1 else 2}") for j in range(8)]
    P += [op("s_lshl_b32 m0, s36, 13"), op(f"s_add_u32 s50, s50, {64*14336}")]
    mA = op("s_xor_b32 m0, m0, 0x1000"); mB = op(f"s_xor_b32 m0, m0, {A_ST + 0x1000}")
    P += [adma(j) for j in range(4)] + [mA, op("s_nop 0")] + [adma(j) for j in range(4, 8)]
    P += [bload(j) for j in range(8)]
    P += [mB, op("s_add_u32 s51, s51, 128")]
    for j in range(nhead): P += ([mA, op("s_nop 0")] if j == 4 else []) + [adma(j)]
    P += [op(f"s_add_u32 s50, s50, {64*14336}")]
    pre = [f"v_lshlrev_b32 v{vL}, 2, v3", f"v_add_u32 v{vL}, {LUT_BASE}, v{vL}",
           "s_lshl_b32 s45, s36, 12", f"s_add_u32 s45, s45, {B_BASE}", "v_xor_b32 v3, v3, v5",
           "v_lshlrev_b32 v2, 4, v3", "v_lshl_add_u32 v2, v5, 11, v2", f"v_add_u32 v{vW}, s45, v2",
           "v_and_b32 v3, 15, v0", "v_and_b32 v4, 1, v6", "s_lshl_b32 s45, s38, 8", "v_lshl_add_u32 v118, v3, 4, s45",
           f"s_mov_b32 s{sO}, s12", f"s_mov_b32 s{sO+1}, s13", f"s_mov_b32 s{sO+2}, {M*N*2}", f"s_mov_b32 s{sO+3}, 0x20000",
           "s_lshl_b32 s47, s37, 2", "s_add_u32 s47, s47, s36", "s_lshl_b32 s47, s47, 6",
           "v_lshl_add_u32 v2, v6, 2, s47", "v_mul_u32_u24 v2, 7168, v2", f"v_add_u32 v{vO}, v2, v118",
           "s_lshl_b32 s47, s36, 6", "v_add_u32 v2, s47, v3", "v_lshlrev_b32 v2, 7, v2",
           "v_bfe_u32 v119, v0, 1, 3", "v_xor_b32 v119, v119, v6", f"v_lshl_add_u32 v{vA}, v119, 4, v2",
           f"v_xor_b32 v{vA+1}, 64, v{vA}",
           "v_lshl_add_u32 v2, v3, 1, v4", "v_lshlrev_b32 v2, 4, v2", "v_lshl_add_u32 v2, v6, 11, v2", f"v_add_u32 v{vB}, {B_BASE}, v2",
           f"v_xor_b32 v{vB+1}, 16, v{vB}",
           "s_lshl_b32 s47, s36, 13", f"s_add_u32 s47, s47, {LUT_BASE}", "v_lshl_add_u32 v119, v0, 4, s47"]
    P += [op(x) for x in pre]
    P += [wait(l="all", v="lut")]
    P += [op(x) for x in ["s_lshl_b32 s56, s48, 16", "s_and_b32 s57, s48, 0xffff0000", "s_lshl_b32 s58, s49, 16", "s_and_b32 s59, s49, 0xffff0000"]]
    for j in range(8):
        q = ACC + 4 * j
        P += [op(f"v_or_b32 v{q+r}, s{56+j//2}, v{116+j%2}", ["lut"]) for r in range(4)]
    for j in range(8):
        q = ACC + 4 * j
        P += [lds(f"ds_write_b128 v119, v[{q}:{q+3}] offset:{j*1024}")]
    P += [op(f"v_mov_b32 v{W+r}, 0") for r in range(4)]
    P += [wait(l="all"), op("s_barrier")]
    P += [op(f"v_mfma_f32_32x32x16_bf16 v[{ACC+16*t}:{ACC+16*t+15}], v[{W}:{W+3}], v[{W}:{W+3}], 0") for t in range(8)]
    def d_or(jp, h, r=R):
        t = "B" if r == R else "P"; d = T + 4*(jp & 1) + 2*h; s1 = r + 4*(2*jp+1) + 2*h; s0 = r + 4*(2*jp) + 2*h
        return op(f"v_lshl_add_u64 v[{d}:{d+1}], v[{s1}:{s1+1}], 4, v[{s0}:{s0+1}]", [f"{t}{2*jp}", f"{t}{2*jp+1}"])
    def d_add(jp, c): return op(f"v_lshl_add_u32 v{W+4*c+jp}, v{T+4*(jp&1)+c}, 7, v{vL}")
    def d_lut(jp, c): return lds(f"ds_read_b32 v{W+4*c+jp}, v{W+4*c+jp}", f"L{jp}{c}")
    def d_wr(c, st): return lds(f"ds_write_b128 v{vW}, v[{W+4*c}:{W+4*c+3}] offset:{st*B_ST + c*512}", f"W{c}", [f"L{jp}{c}" for jp in range(4)])
    for jp in range(4):
        P += [wait(v=f"P{2*jp+1}"), d_or(jp, 0, RP), d_or(jp, 1, RP)] + [d_add(jp, c) for c in range(4)] + [d_lut(jp, c) for c in range(4)]
    P += [wait(l="all")] + [d_wr(c, 0) for c in range(4)]

    def rdA(ks, m, u): return lds(f"ds_read_b128 a[{F[ks]+4*m}:{F[ks]+4*m+3}], v{vA+ks} offset:{u*A_ST + m*2048}", f"fa{ks}{m}", ["A7"] if ks == 0 and m == 0 else [])
    def rdB(ks, t, u): return lds(f"ds_read_b128 a[{F[ks]+16+4*t}:{F[ks]+19+4*t}], v{vB+(t>>2)} offset:{u*B_ST + ks*8192 + (t&3)*512}", f"fb{ks}{t}")
    def mfmas(ks, mmajor=False):
        f = F[ks]; r = []
        seq = [(mm if t % 2 == 0 else NM-1-mm, t) for t in range(NN) for mm in range(NM)]
        if mmajor: seq = [(m, t) for m in range(NM) for t in range(NN)]
        for m, t in seq:
            d = ACC + (m*NN + t) * AW
            r.append(op(f"v_mfma_f32_16x16x32_bf16 v[{d}:{d+3}], a[{f+4*m}:{f+4*m+3}], a[{f+16+4*t}:{f+19+4*t}], v[{d}:{d+3}]", [f"fa{ks}{m}", f"fb{ks}{t}"]))
        return r
    def step(u):
        g = Gaps()
        late = []
        dqon = "nodq" not in exp
        g.put("sc", op("s_barrier"), 0, 0)
        if dqon and "nowr" not in exp:
            for c in range(4):
                p = g.put("wr", d_wr(c, 1 - u), om + wrs*c, om + wrs*c)
                for q in range(1, quiet + 1): g.nods.add(p + q)
        bp = {}; ap = {}
        for i in range(16):
            p = vp[i] % 64
            if i < 8:
                if "noa" not in exp: p = g.put("vm", adma(i, ["fa13"] if i < nhead else []), p, p + 1)
                ap[i] = p
            else:
                if "nob" not in exp: p = g.put("vm", bload(i - 8), p, p + 1)
                bp[i - 8] = p
        lg = {}
        if dqon:
            for jp in range(4):
                lg[jp] = [g.put("ds", d_lut(jp, c), lpos[jp] + lstr[jp] * c) for c in range(4)]
        seq0 = [rdA(0, 0, u), rdA(0, 1, u), rdA(0, 2, u), rdA(0, 3, u)] + [rdB(0, t, u) for t in range(8)]
        p = 31
        for m in range(4): p = g.put("ds", rdA(1, m, u), p, om - 1)
        pa13 = p
        p = 0
        for x in seq0: p = g.put("ds", x, p, 27)
        for t in range(8): p = g.put("ds", rdB(1, t, u), max(p, 4*t + 3), om - 1)
        g.put("sc", wait(l="fb07"), 30, 31)
        g.put("sc", wait(l="L33" if dqon and lg[3][3] > pa13 else "fa13"), min(om, phi) - 1, min(om, phi))
        if dqon:
            for jp in range(4):
                first = lpos[jp]
                po = first - olead[jp]
                if "nob" not in exp: g.put("sc", wait(v=f"B{2*jp+1}"), po - 1, po)
                oq = []
                for h in range(2):
                    oq.append(g.put("va", d_or(jp, h), po, first - 2))
                    if first < om: assert oq[-1] < bp[2*jp], (oq, bp)
                for c in range(4):
                    lo = max(oq[c >> 1] + 1, lg[jp][c] - 4)
                    if first > om: lo = max(lo, om + wrs*c + 1)
                    g.put("va", d_add(jp, c), lo, lg[jp][c] - 1)
        lastw = "W3" if dqon and "nowr" not in exp else "fb17"
        g.put("sc", wait(l=lastw, v="A7" if "noa" not in exp else None), 62, 62)
        cr = "s52" if "samek" in exp else "s51"
        qa = g.put("sc", mA, (ap[3] + 1) % 64, (ap[4] - 1) % 64)
        q = g.put("sc", mB, ap[7] + 1, ap[0] - 1)
        q = g.put("sc", op(f"s_add_u32 {cr}, {cr}, 128"), q + 1, ap[0] - 1)
        if u == 0:
            q = g.put("sc", op(f"s_cmp_lt_u32 {cr}, 2048"), q + 1, ap[0] - 1)
            q = g.put("sc", op(f"s_cselect_b32 s{sX+2}, {M*K*2}, 0"), q + 1, ap[0] - 1)
        assert q < bp[7]
        qb = g.put("sc", op(f"s_add_u32 s50, s50, {0 if 'samek' in exp else 64*14336}"), bp[7] + 1)
        if u == 1: g.put("sc", op(f"s_cmp_lt_u32 {cr}, {17*128}"), max(qa if qa > 32 else 0, qb) + 1, 63)
        if diag == 2:
            g.put("sc", op("s_memtime s[58:59]"), 1); g.put("sc", op("s_memrealtime s[56:57]"), 2)
            g.put("va", op("v_mov_b32_dpp v1, v1 row_shr:1 row_mask:0x5 bank_mask:0xf"), 44)
            g.put("va", op("v_writelane_b32 v1, s58, 0"), 48); g.put("va", op("v_writelane_b32 v1, s56, 32"), 49)
        return g.slots()
    mf = mfmas(1) + mfmas(0)
    if "nomfma" in exp: mf = [op("s_nop 0") for _ in mf]
    s0, s1 = step(0), step(1)
    h0 = place(mf[:32], {g: v for g, v in s0.items() if g < 32})
    rest = place(mf[32:], {g - 32: v for g, v in s0.items() if g >= 32}) + place(mf, s1)
    lateops = [x for g in range(om, 64) for x in s1[g] if (x.kind == "wait" and x.v and x.v.startswith("B")) or x.text.startswith("v_lshl_add") or x.text.startswith("ds_read_b32")]
    if "samek" in exp: P += [op("s_mov_b32 s52, 128")]
    P += lateops + [wait(l="W3", v="A7")]
    peel = [x for g in range(32) for x in s0[g]]
    chk = exp in ("", "samek")
    tP = resolve(P, check=chk); tE = resolve(peel, prev=P, check=chk)
    t1 = resolve(rest, prev=P + peel, check=chk)
    t2 = resolve(h0 + rest, prev=P + peel + rest, check=chk)
    if chk:
        t3 = resolve(h0 + rest, prev=h0 + rest + h0 + rest)
        assert t2 == t3 and t2[-len(t1):] == t1, "wait counts differ between entry paths"
    else: t1 = t2[-len(t1):]
    a(*tP); a(tE[0]); stamp(1); a(*tE[1:])
    a("s_branch L_ENTRY")
    a(".p2align 6")
    a("L_LOOP:"); a(*t2[:len(t2) - len(t1)])
    a("L_ENTRY:"); a(*t1)
    a("s_cbranch_scc1 L_LOOP")
    a(f"global_load_dwordx4 v[{vSc}:{vSc+3}], v118, s[10:11]")
    a(*[x.text for x in mfmas(1, True)])
    stamp(2)
    a("s_waitcnt vmcnt(0) lgkmcnt(0)")
    SC = 32
    for h in range(NN // 2):
        a(f"v_lshlrev_b32 v{SC+2*h}, 16, v{vSc+h}", f"v_and_b32 v{SC+2*h+1}, 0xffff0000, v{vSc+h}")
    n = 0
    for m in range(NM):
        for r in range(0, AW, 2):
            for t in range(NN):
                d = ACC + (m*NN + t) * AW + r; sc = SC + (t & ~1)
                sel = "op_sel:[0,1] op_sel_hi:[1,1]" if t & 1 else "op_sel:[0,0] op_sel_hi:[1,0]"
                a(f"v_pk_mul_f32 v[{d}:{d+1}], v[{d}:{d+1}], v[{sc}:{sc+1}] {sel}")
            for rr in range(2):
                q = 64 + 4 * (n % 8); n += 1
                for h in range(4):
                    a(f"v_cvt_pk_bf16_f32 v{q+h}, v{ACC+(m*NN+2*h)*AW+r+rr}, v{ACC+(m*NN+2*h+1)*AW+r+rr}")
                a(f"s_mov_b32 s56, {(16*m + r + rr) * 7168}")
                a(f"buffer_store_dwordx4 v[{q}:{q+3}], v{vO}, {srd(sO)}, s56 offen {store_flags}")
    if diag:
        stamp(3); a("s_waitcnt vmcnt(0)"); stamp(4)
        a("s_waitcnt lgkmcnt(0)")
        for i in range(5): a(f"v_writelane_b32 v1, s{60+2*i}, {16+i}")
        a("v_writelane_b32 v1, s72, 21", "v_writelane_b32 v1, s74, 22")
        a("s_getreg_b32 s58, hwreg(HW_REG_XCC_ID)", "s_nop 3", "v_writelane_b32 v1, s58, 23")
        a("s_lshl_b32 s58, s2, 2", "s_add_u32 s58, s58, s36", "s_lshl_b32 s58, s58, 8")
        a("v_lshl_add_u32 v61, v0, 2, s58", "global_store_dword v61, v1, s[16:17]", "s_waitcnt vmcnt(0)")
    if helper:
        a("s_endpgm", "L_HELPER:")
        helper_h2(a, **helper)
    a("L_END:")
    return dict(label=NAME+"_kernel", body=a.text(), grid=nwg, block=256, lds=LDS, vgpr=256 + 2*FSZ, accum=256)

if __name__ == "__main__":
    kw = eval("dict(" + (sys.argv[2] if len(sys.argv) > 2 else "") + ")")
    open(sys.argv[1], "w").write(file_text([gen(**kw)]))
```

```python
from common import *
from sched import *
import sys

M, K, N = 2048, 1024, 3584
A_ST = 0x8000; B_BASE = 0x10000; B_ST = 0x4000; LUT_BASE = 0x18000; LDS = 0x20000
NF4 = [0xBF80, 0xBF32, 0xBF06, 0xBECA, 0xBE92, 0xBE3D, 0xBDBA, 0x0000, 0x3DA3, 0x3E25, 0x3E7C, 0x3EAD, 0x3EE2, 0x3F10, 0x3F39, 0x3F80]

class E:
    def __init__(s): s.L = []
    def __call__(s, *xs):
        for x in xs: s.L.append(x)
    def text(s): return "\n".join(s.L)

class Gaps:
    def __init__(s, n=64):
        s.n = n; s.sc = [[] for _ in range(n)]; s.mem = [[] for _ in range(n)]; s.va = [[] for _ in range(n)]
        s.nods = set(); s.full = set()
    def used(s, g): return len(s.mem[g]) + len(s.va[g]) + max(0, len(s.sc[g]) - 1)
    def ok(s, cls, g, x=None):
        if cls == "sc": return len(s.sc[g]) == 0
        if cls == "wr": return s.used(g) == 0
        if cls == "ds": return g not in s.full and g not in s.nods and s.used(g) < 2 and not any(y.kind == "lds" for y in s.mem[g])
        return g not in s.full and s.used(g) < 2
    def put(s, cls, x, target, hi=None, back=False):
        g = target
        while True:
            if back: assert g >= 0 and (hi is None or g >= hi), f"cannot place {x.text or 'wait'} in [{hi},{target}]"
            else: assert g < s.n and (hi is None or g <= hi), f"cannot place {x.text or 'wait'} in [{target},{hi}]"
            if cls == "sc" and x.kind == "wait" and s.sc[g] and s.sc[g][0].kind == "wait":
                w = s.sc[g][0]
                if (w.l is None or x.l is None) and (w.v is None or x.v is None):
                    w.l = w.l or x.l; w.v = w.v or x.v; return g
            if s.ok(cls, g): break
            g += -1 if back else 1
        if cls == "sc": s.sc[g].append(x)
        elif cls == "va": s.va[g].append(x)
        else: s.mem[g].append(x)
        if cls == "wr": s.full.add(g)
        return g
    def slots(s): return {g: s.sc[g] + s.mem[g] + s.va[g] for g in range(s.n)}

def helper_h2(a, s0=1, flags="", code=False):
    a("s_add_u32 s41, s41, 4", "s_lshl2_add_u32 s41, s41, s36")
    a("v_and_b32 v0, 63, v0", "s_bfe_u32 s42, s2, 0x10002", f"s_mov_b32 s22, {M*K*2}", "s_mov_b32 s23, 0x20000")
    if code:
        a("s_getpc_b64 s[48:49]", "L_PC:", f"s_sub_u32 s48, s48, L_PC-{NAME}_kernel", "s_subb_u32 s49, s49, 0")
        a("v_and_b32 v4, 3, v0", "s_lshl_b32 s45, s41, 9", "v_lshl_add_u32 v4, v4, 7, s45", f"v_min_u32 v4, L_PC-{NAME}_kernel, v4", "global_load_dword v7, v4, s[48:49]")
    a("v_min_u32 v2, 55, v0", "v_cmp_lt_u32 vcc, 27, v2", "v_lshlrev_b32 v2, 7, v2", f"v_mov_b32 v3, {14336 - 28*128}", "v_cndmask_b32 v3, 0, v3, vcc", "v_add_u32 v2, v2, v3")
    a("s_lshl_b32 s45, s42, 4", "s_add_u32 s45, s45, s41", f"s_mul_i32 s45, s45, {2*14336}", "s_mul_i32 s46, s43, 3584", "s_add_u32 s45, s45, s46", "v_add_u32 v2, s45, v2")
    a("v_lshrrev_b32 v3, 2, v0", "v_and_b32 v4, 3, v0", "v_lshlrev_b32 v3, 11, v3", "v_lshl_add_u32 v3, v4, 7, v3")
    a("s_lshl2_add_u32 s45, s42, s43", "s_lshl4_add_u32 s45, s45, s41", "s_lshl_b32 s45, s45, 15", "v_add_u32 v3, s45, v3")
    a(f"s_mov_b32 s50, {s0*64*14336}")
    a("s_waitcnt lgkmcnt(0)")
    a("s_mov_b64 s[24:25], s[6:7]", "s_mov_b64 s[20:21], s[4:5]")
    a(f"buffer_load_dword v8, v3, s[20:23], 0 offen {flags}")
    for s in range(s0, 4):
        a(f"buffer_load_dword v9, v2, s[24:27], s50 offen {flags}", f"s_add_u32 s50, s50, {64*14336}")
    a("L_HLOOP:")
    a("v_add_u32 v3, 512, v3")
    a(f"buffer_load_dword v8, v3, s[20:23], 0 offen {flags}")
    for s in range(4):
        a(f"buffer_load_dword v9, v2, s[24:27], s50 offen {flags}", f"s_add_u32 s50, s50, {64*14336}")
    a(f"s_cmp_lt_u32 s50, {K*N*4}", "s_cbranch_scc1 L_HLOOP")
    a("s_waitcnt vmcnt(0)")

def helper_h4(a, s0=1, flags="", code=False, xs=(), xlead=1):
    a("s_add_u32 s41, s41, 4", "s_lshl2_add_u32 s41, s41, s36")
    a("v_and_b32 v0, 63, v0", "s_bfe_u32 s42, s2, 0x10002", f"s_mov_b32 s22, {M*K*2}", "s_mov_b32 s23, 0x20000")
    if code:
        a("s_getpc_b64 s[48:49]", "L_PC:", f"s_sub_u32 s48, s48, L_PC-{NAME}_kernel", "s_subb_u32 s49, s49, 0")
        a("v_and_b32 v4, 3, v0", "s_lshl_b32 s45, s41, 9", "v_lshl_add_u32 v4, v4, 7, s45", f"v_min_u32 v4, L_PC-{NAME}_kernel, v4", "global_load_dword v7, v4, s[48:49]")
    a("v_lshrrev_b32 v2, 4, v0", "v_and_b32 v3, 15, v0", "v_mul_u32_u24 v2, 14336, v2", "v_lshl_add_u32 v2, v3, 7, v2")
    a(f"s_mul_i32 s45, s41, {4*14336}", "s_mul_i32 s46, s40, 7", "s_lshr_b32 s46, s46, 1", "s_lshl_b32 s46, s46, 9", "s_add_u32 s45, s45, s46", "v_add_u32 v2, s45, v2")
    a("v_lshrrev_b32 v3, 2, v0", "v_and_b32 v4, 3, v0", "v_lshlrev_b32 v3, 11, v3", "v_lshl_add_u32 v3, v4, 7, v3")
    a("s_lshl4_add_u32 s45, s40, s41", "s_lshl_b32 s45, s45, 15", "v_add_u32 v3, s45, v3")
    if xs: a("s_lshl_b32 s45, s41, 17", "v_lshl_add_u32 v4, v0, 11, s45", "s_mov_b32 s51, 0x200000")
    a(f"s_mov_b32 s50, {s0*64*14336}")
    a("s_waitcnt lgkmcnt(0)")
    a("s_mov_b64 s[24:25], s[6:7]", "s_mov_b64 s[20:21], s[4:5]")
    a(f"buffer_load_dword v8, v3, s[20:23], 0 offen {flags}")
    for s in range(16):
        if (s + xlead) % 4 == 0 and 0 < s + xlead < 16: a(f"buffer_load_dword v8, v3, s[20:23], 0 offen offset:{(s+xlead)*128} {flags}")
        if s >= s0: a(f"buffer_load_dword v9, v2, s[24:27], s50 offen {flags}", f"s_add_u32 s50, s50, {64*14336}")
        if s in xs: a(f"buffer_load_dword v8, v4, s[20:23], 0 offen offset:{s*128} {flags}", f"buffer_load_dword v8, v4, s[20:23], s51 offen offset:{s*128} {flags}")
    a("s_waitcnt vmcnt(0)")

def gen(arr=0, cpf=1, early=4, earlyb=0, hnear=1, diag=0, helper=dict(s0=1), store_flags="nt", exp="", tau=8, phi=43, om=42, wrs=4, quiet=3, orpos=None, lat=5):
    a = E()
    sX, sQ, sO = 20, 24, 28
    def srd(r): return f"s[{r}:{r+3}]"
    nwg = 256 if helper else 224
    def stamp(idx):
        if diag:
            a(f"s_memrealtime s[{60+2*idx}:{61+2*idx}]")
            if idx in (1, 2): a(f"s_memtime s[{70+2*idx}:{71+2*idx}]")
    ACC = 128; R = 32; T = 64; W = 96; RP = ACC + 64
    NM, NN, AW = 4, 8, 4
    FSZ = 48; F = [0, FSZ]
    vAo, vBo, vA, vB, vO, vL, vW, vSc = 8, 16, 24, 26, 28, 29, 30, 112
    vp = [(phi + 4 * i) for i in range(16)]
    nhead = sum(1 for i in range(16) if vp[i] < 64)
    stamp(0)
    a("s_load_dwordx4 s[4:7], s[0:1], 0", "s_load_dwordx4 s[8:11], s[0:1], 24")
    if cpf:
        a("s_getpc_b64 s[48:49]", "L_PC0:", "v_lshlrev_b32 v2, 7, v0", "v_min_u32 v2, L_END-L_PC0, v2", "global_load_dword v7, v2, s[48:49]")
    if diag: a("s_load_dwordx2 s[16:17], s[0:1], 48")
    a(f"s_cmp_ge_u32 s2, {nwg}", "s_cbranch_scc1 L_END")
    a("v_lshrrev_b32 v1, 6, v0", "v_lshrrev_b32 v5, 5, v0", "v_and_b32 v3, 31, v0")
    a("v_readfirstlane_b32 s36, v1")
    a("s_and_b32 s40, s2, 7" if arr else "s_and_b32 s43, s2, 3", "s_lshr_b32 s41, s2, 3")
    a(f"s_mov_b32 s{sQ+2}, {K*N*4}", f"s_mov_b32 s{sQ+3}, 0x20000")
    if helper: a("s_sub_u32 s41, s41, 4", "s_cbranch_scc1 L_HELPER")
    if arr: a("s_mul_i32 s44, s40, 28", "s_add_u32 s41, s41, s44", "s_lshr_b32 s38, s41, 3")
    else: a("s_lshr_b32 s38, s41, 2", "s_mul_i32 s44, s43, 7", "s_add_u32 s38, s38, s44")
    a("v_mul_u32_u24 v2, %d, v5" % (8*14336), "s_lshl_b32 s50, s38, 9", f"v_lshl_add_u32 v{vBo}, v3, 4, v2")
    a("s_movk_i32 s47, 0x3800")
    for j in range(1, 8): a(f"v_add_u32 v{vBo+j}, s47, v{vBo+j-1}")
    a("s_waitcnt lgkmcnt(0)")
    a(f"s_mov_b64 s[{sQ}:{sQ+1}], s[6:7]")
    P = []
    xs = [0]
    def xstamp(k=3):
        if diag != k: return []
        xs[0] += 1
        return [op(f"s_memrealtime s[{76+2*xs[0]}:{77+2*xs[0]}]")]
    P += xstamp()
    def bload(j): return vm(f"buffer_load_dwordx4 v[{R+4*j}:{R+4*j+3}], v{vBo+j}, {srd(sQ)}, s50 offen", f"B{j}")
    def adma(j, need=()): return vm(f"buffer_load_dwordx4 v{vAo+j}, {srd(sX)}, s51 offen offset:{(j&3)*1024} lds", f"A{j}", need)
    mA = op("s_xor_b32 m0, m0, 0x1000"); mB = op(f"s_xor_b32 m0, m0, {A_ST + 0x1000}")
    P += [bload(j) for j in range(8)]
    if helper and hnear:
        h = E(); h("s_branch L_MAIN", "L_HELPER:"); (helper_h4 if arr else helper_h2)(h, **helper); h("s_endpgm", "L_MAIN:")
        P += [op(h.text())]
    P += xstamp()
    LT = 64
    lb = [f"v_mov_b32 v2, {NF4[0] | NF4[8] << 16:#x}"]
    for j in range(1, 8): lb += ["s_lshl_b64 exec, exec, 8", f"v_mov_b32 v2, {NF4[j] | NF4[8+j] << 16:#x}"]
    lb += ["s_mov_b64 exec, -1",
           "s_and_b32 s45, s36, 1", "s_mul_i32 s45, s45, 0x0202", "s_lshr_b32 s46, s36, 1", "s_mul_i32 s46, s46, 0x02020000",
           "s_add_u32 s45, s45, s46", "s_add_u32 s45, s45, 0x05040100", "v_mov_b32 v4, s45",
           f"s_mov_b32 s44, {LUT_BASE}", "v_lshl_add_u32 v31, v0, 4, s44", "v_mov_b64 v[116:117], 0", "v_mov_b64 v[118:119], 0"]
    P += [op(x) for x in lb]
    def lutv(j):
        q = LT + 4 * j
        return [op(f"s_mov_b32 s45, {NF4[2*j] | NF4[2*j+1] << 16:#x}"), op(f"v_perm_b32 v{q}, s45, v2, v4"), op(f"v_mov_b32 v{q+1}, v{q}"), op(f"v_mov_b64 v[{q+2}:{q+3}], v[{q}:{q+1}]")]
    pre = [f"v_lshl_add_u32 v{vL}, v3, 2, s44",
           f"s_mov_b64 s[{sX}:{sX+1}], s[4:5]", f"s_mov_b32 s{sX+2}, {M*K*2}", f"s_mov_b32 s{sX+3}, 0x20000", "s_mov_b32 s51, 0",
           *(["s_and_b32 s37, s41, 7"] if arr else ["s_bfe_u32 s42, s2, 0x10002", "s_and_b32 s37, s41, 3", "s_lshl2_add_u32 s37, s42, s37"]), "s_lshl2_add_u32 s37, s37, s36",
           "v_and_b32 v120, 1, v5", "v_xor_b32 v3, v3, v120", "v_lshlrev_b32 v120, 4, v3", "v_lshl_add_u32 v120, v5, 11, v120", f"v_add_u32 v{vW}, {B_BASE}, v120",
           "v_and_b32 v0, 63, v0",
           "s_lshl_b32 s46, s37, 17", "v_lshrrev_b32 v6, 3, v0",
           "v_lshl_add_u32 v120, v6, 11, s46", "v_and_b32 v121, 7, v0", "v_lshrrev_b32 v6, 4, v0", "v_xor_b32 v121, v121, v6",
           f"v_lshl_add_u32 v{vAo}, v121, 4, v120", f"v_xor_b32 v121, 64, v{vAo}"]
    pre += [f"v_add_u32 v{vAo+j}, {j*16384 - (j&3)*1024}, v{121 if j&1 else vAo}" for j in range(1, 8)]
    pre += ["s_lshl_b32 m0, s36, 13", "v_and_b32 v3, 15, v0", "s_lshl_b32 s46, s38, 8", "v_lshl_add_u32 v122, v3, 4, s46", f"s_add_u32 s50, s50, {64*14336}"]
    post = [f"s_mov_b64 s[{sO}:{sO+1}], s[10:11]", f"s_mov_b32 s{sO+2}, {M*N*2}", f"s_mov_b32 s{sO+3}, 0x20000",
           "s_lshl_b32 s47, s37, 6", "v_and_b32 v121, 1, v6",
           "v_lshl_add_u32 v120, v6, 2, s47", "v_mul_u32_u24 v120, 7168, v120", f"v_add_u32 v{vO}, v120, v122",
           "s_lshl_b32 s47, s36, 13", "v_lshl_add_u32 v120, v3, 7, s47",
           "v_bfe_u32 v5, v0, 1, 3", "v_xor_b32 v5, v5, v6", f"v_lshl_add_u32 v{vA}, v5, 4, v120",
           f"v_xor_b32 v{vA+1}, 64, v{vA}",
           "v_lshl_add_u32 v120, v3, 1, v121", "v_lshlrev_b32 v120, 4, v120", "v_lshl_add_u32 v120, v6, 11, v120", f"v_add_u32 v{vB}, {B_BASE}, v120",
           f"v_xor_b32 v{vB+1}, 16, v{vB}"]
    pre = [op(x) for x in pre]; post = [op(x) for x in post]
    def zero(t): return op(f"v_mfma_f32_32x32x16_bf16 v[{ACC+16*t}:{ACC+16*t+15}], v[116:119], v[116:119], 0")
    P += lutv(0)
    for j in range(8):
        P += [zero(j), lds(f"ds_write_b128 v31, v[{LT+4*j}:{LT+4*j+3}] offset:{j*4096}")]
        if j < 7: P += lutv(j + 1)
        P += pre[3*j:3*j+3] if j < 7 else pre[21:]
    P += xstamp()
    A0 = [adma(j) for j in range(8)]
    P += A0[:early] + ([mA] if early == 4 else []) + post
    P += [wait(l="all"), op("s_barrier")] + xstamp()
    def d_or(jp, h):
        d = T + 4*jp + 2*h; s1 = R + 4*(2*jp+1) + 2*h; s0 = R + 4*(2*jp) + 2*h
        return op(f"v_lshl_add_u64 v[{d}:{d+1}], v[{s1}:{s1+1}], 4, v[{s0}:{s0+1}]", [f"B{2*jp}", f"B{2*jp+1}"])
    def d_add(jp, c): return op(f"v_lshl_add_u32 v{W+4*c+jp}, v{T+4*jp+c}, 7, v{vL}")
    def d_lut(jp, c): return lds(f"ds_read_b32 v{W+4*c+jp}, v{W+4*c+jp}", f"L{jp}{c}")
    def d_wr(c, st): return lds(f"ds_write_b128 v{vW}, v[{W+4*c}:{W+4*c+3}] offset:{st*B_ST + c*512}", f"W{c}", [f"L{jp}{c}" for jp in range(4)])
    na = early
    for jp in range(4):
        P += [wait(v=f"B{2*jp+1}"), d_or(jp, 0), d_or(jp, 1)] + [d_add(jp, c) for c in range(4)] + [d_lut(jp, c) for c in range(4)]
        P += A0[na:na+2]; na += 2
        if na == 4: P += [mA]
    B1 = [vm(f"global_load_dwordx4 v[{vSc}:{vSc+3}], v122, s[8:9]", "SC")] + [bload(j) for j in range(8)]
    P += B1[:earlyb]
    P += xstamp() + [wait(l="all")] + [d_wr(c, 0) for c in range(4)] + xstamp()
    P += B1[earlyb:]
    P += [mB, op("s_add_u32 s51, s51, 128"), op(f"s_add_u32 s50, s50, {64*14336}")]
    P += xstamp()

    def rdA(ks, m, u): return lds(f"ds_read_b128 a[{F[ks]+4*m}:{F[ks]+4*m+3}], v{vA+ks} offset:{u*A_ST + m*2048}", f"fa{ks}{m}", ["A7o"] if ks == 0 and m == 0 else [])
    def rdB(ks, t, u): return lds(f"ds_read_b128 a[{F[ks]+16+4*t}:{F[ks]+19+4*t}], v{vB+(t>>2)} offset:{u*B_ST + ks*8192 + (t&3)*512}", f"fb{ks}{t}")
    def mfmas(ks):
        f = F[ks]; r = []
        for m, t in [(mm if t % 2 == 0 else NM-1-mm, t) for t in range(NN) for mm in range(NM)]:
            d = ACC + (m*NN + t) * AW
            r.append(op(f"v_mfma_f32_16x16x32_bf16 v[{d}:{d+3}], a[{f+4*m}:{f+4*m+3}], a[{f+16+4*t}:{f+19+4*t}], v[{d}:{d+3}]", [f"fa{ks}{m}", f"fb{ks}{t}"]))
        return r
    mf = mfmas(1)[32-tau:] + mfmas(0) + mfmas(1)[:32-tau]
    def step(u):
        g = Gaps()
        dqon = "nodq" not in exp; wron = dqon and "nowr" not in exp
        g.put("sc", op("s_barrier"), 0, 0)
        wend = om
        if wron:
            for c in range(4):
                p = g.put("wr", d_wr(c, 1 - u), om + wrs*c, om + wrs*c)
                for q in range(1, quiet + 1): g.nods.add(p + q)
        wend = om + wrs*3 + quiet + 1
        bp = {}; ap = {}
        for i in range(16):
            p = vp[i] % 64
            if i < 8:
                if "noa" not in exp: p = g.put("vm", adma(i, ["fa13"] if vp[i] < 64 else []), p, p + 1)
                ap[i] = p
            else:
                if "nob" not in exp: p = g.put("vm", bload(i - 8), p, p + 1)
                bp[i - 8] = p
        orp = orpos or [min(bp[2*jp] - 2, om - 14) if bp[2*jp] < om else bp[2*jp] - 2 for jp in range(4)]
        jobs = []
        for t in range(8):
            jobs.append([0, tau + 4*t - lat - 1, rdB(0, t, u)])
            jobs.append([max(0, tau + 32 + 4*t + 3 - 64), min(om - 1, tau + 32 + 4*t - lat - 1), rdB(1, t, u)])
        for m in range(4): jobs.append([tau - 1, min(tau + 32, phi) - lat - 1, rdA(1, m, u)])
        vq = []
        if dqon:
            for jp in range(4):
                late = orp[jp] >= om
                if late:
                    oq = [g.put("va", d_or(jp, h), orp[jp] + 1, None, back=True) for h in (1, 0)]
                    if "nob" not in exp: g.put("sc", wait(v=f"B{2*jp+1}"), min(oq), None, back=True)
                else:
                    vq += [[orp[jp] - 1, d_or(jp, h), jp if h == 0 else None, bp[2*jp] - 1] for h in range(2)]
                for c in range(4):
                    vq.append([0, d_add(jp, c), [0, om - lat + c - (3 - jp) * 4, d_lut(jp, c)], om])
        pos = {}
        for q in range(om):
            cand = [j for j in jobs if j[0] <= q]
            if cand and g.ok("ds", q):
                j = min(cand, key=lambda j: j[1]); jobs.remove(j); g.put("ds", j[2], q, q); pos[j[2].tag] = q
            while vq and vq[0][0] <= q and g.ok("va", q):
                rel, x, job, dl = vq.pop(0)
                assert q <= dl, x.text
                g.put("va", x, q, q)
                if isinstance(job, list): job[0] = q + 1; jobs.append(job)
                elif job is not None and "nob" not in exp: g.put("sc", wait(v=f"B{2*job+1}"), q, None, back=True)
        assert not jobs and not vq, [j[2].text for j in jobs]
        p = wend
        for m in range(4): p = g.put("ds", rdA(0, m, 1 - u), p, 63); pos[f"fa0{m}"] = p - 64
        pa0 = pos["fa00"] + 64
        order = sorted(pos, key=lambda t: pos[t]); covered = -99
        needs = []
        for i, x in enumerate(mf):
            for t in x.need:
                if i >= tau: needs.append((i - 1, t))
        if wron: needs += [(om + wrs*c, f"L{jp}{c}") for c in range(4) for jp in range(4)]
        needs += [(ap[0], f"fa1{m}") for m in range(4)]
        for q, t in sorted(needs):
            if pos[t] <= covered: continue
            best = [y for y in order if pos[y] <= max(pos[t], q - lat)][-1]
            covered = pos[best]
            g.put("sc", wait(l=best), q, pos[best] + 1, back=True)
        if "noa" not in exp:
            w = wait(v="A7" if ap[7] < ap[0] or ap[7] >= pa0 else "B0"); g.put("sc", w, pa0, None, back=True)
        g.put("sc", wait(l="W3" if wron else "fb17"), 62, 62)
        cr = "s52" if "samek" in exp else "s51"
        qa = g.put("sc", mA, (ap[3] + 1) % 64, (ap[4] - 1) % 64)
        q = g.put("sc", mB, ap[7] + 1 if ap[7] < ap[0] else 1, ap[0] - 1)
        q = g.put("sc", op(f"s_add_u32 {cr}, {cr}, 128"), q + 1, ap[0] - 1)
        if u == 0:
            q = g.put("sc", op(f"s_cmp_lt_u32 {cr}, 2048"), q + 1, ap[0] - 1)
            q = g.put("sc", op(f"s_cselect_b32 s{sX+2}, {M*K*2}, 0"), q + 1, ap[0] - 1)
        qb = g.put("sc", op(f"s_add_u32 s50, s50, {0 if 'samek' in exp else 64*14336}"), max(q, bp[7]) + 1, (bp[0] - 1) if bp[0] > bp[7] else 63)
        if u == 1: g.put("sc", op(f"s_cmp_lt_u32 {cr}, {17*128}"), max(qa if qa > 32 else 0, qb) + 1, 63)
        if diag == 2:
            g.put("sc", op("s_memtime s[58:59]"), 1); g.put("sc", op("s_memrealtime s[56:57]"), 2)
            g.put("va", op("v_mov_b32_dpp v1, v1 row_shr:1 row_mask:0x5 bank_mask:0xf"), 44)
            g.put("va", op("v_writelane_b32 v1, s58, 0"), 48); g.put("va", op("v_writelane_b32 v1, s56, 32"), 49)
        return g.slots(), ap
    (s0, ap), (s1, _) = step(0), step(1)
    for sl in (s0, s1):
        for v in sl.values():
            for x in v:
                if "A7o" in x.need: x.need = ("A7",) if (ap[7] < ap[0]) else ()
    mfx = [op("s_nop 0") for _ in mf] if "nomfma" in exp else mf
    h0 = place(mfx[:tau], {g: v for g, v in s0.items() if g < tau})
    rest = place(mfx[tau:], {g - tau: v for g, v in s0.items() if g >= tau}) + place(mfx, s1)
    if "samek" in exp: P += [op("s_mov_b32 s52, 128")]
    for g in range(min(ap[0], om), 64):
        for x in s1[g]:
            if x.kind == "vm" and g >= ap[0]: P.append(vm(x.text, x.tag))
            elif x is mA: P += [x, op("s_nop 0")]
            elif g >= om and (x.text.startswith("v_lshl_add") or x.text.startswith("ds_read")): P.append(x)
            elif g >= om and x.kind == "wait": P.append(wait(l=x.l if x.l == "W3" else None, v=x.v))
    peel = [x for g in range(tau) for x in s0[g]]
    chk = exp in ("", "samek")
    tP = resolve(P, check=chk); tE = resolve(peel, prev=P, check=chk)
    t1 = resolve(rest, prev=P + peel, check=chk)
    t2 = resolve(h0 + rest, prev=P + peel + rest, check=chk)
    if chk:
        t3 = resolve(h0 + rest, prev=h0 + rest + h0 + rest)
        assert t2 == t3 and t2[-len(t1):] == t1, "wait counts differ between entry paths"
    else: t1 = t2[-len(t1):]
    a(*tP); a(tE[0]); stamp(1); a(*tE[1:])
    a(*[x.text for x in xstamp()]); a("s_branch L_ENTRY")
    a(".p2align 6")
    a("L_LOOP:"); a(*t2[:len(t2) - len(t1)])
    a("L_ENTRY:"); a(*t1)
    a("s_cbranch_scc1 L_LOOP")
    SC = 80
    sc = []
    for h in range(NN // 2):
        sc += [op(f"v_lshlrev_b32 v{SC+2*h}, 16, v{vSc+h}"), op(f"v_and_b32 v{SC+2*h+1}, 0xffff0000, v{vSc+h}")]
    a(*[x.text for x in place(mf[:tau], {i: sc[2*i:2*i+2] for i in range(4)})])
    stamp(2)
    a("s_waitcnt vmcnt(0) lgkmcnt(0)", "s_nop 1")
    n = 0
    for m in range(NM):
        for r in range(0, AW, 2):
            for t in range(NN):
                d = ACC + (m*NN + t) * AW + r; s_ = SC + (t & ~1)
                sel = "op_sel:[0,1] op_sel_hi:[1,1]" if t & 1 else "op_sel:[0,0] op_sel_hi:[1,0]"
                if "nomul" not in exp: a(f"v_pk_mul_f32 v[{d}:{d+1}], v[{d}:{d+1}], v[{s_}:{s_+1}] {sel}")
            for rr in range(2):
                q = 32 + 4 * (n % 8); n += 1
                for h in range(4):
                    a(f"v_cvt_pk_bf16_f32 v{q+h}, v{ACC+(m*NN+2*h)*AW+r+rr}, v{ACC+(m*NN+2*h+1)*AW+r+rr}")
                a(f"s_mov_b32 s56, {(16*m + r + rr) * 7168}")
                a(f"buffer_store_dwordx4 v[{q}:{q+3}], v{vO}, {srd(sO)}, s56 offen {store_flags}")
    if diag:
        stamp(3); a("s_waitcnt vmcnt(0)"); stamp(4)
        a("s_waitcnt lgkmcnt(0)")
        for i in range(5): a(f"v_writelane_b32 v1, s{60+2*i}, {16+i}")
        for i in range(xs[0]): a(f"v_writelane_b32 v1, s{78+2*i}, {24+i}")
        a("v_writelane_b32 v1, s72, 21", "v_writelane_b32 v1, s74, 22")
        a("s_getreg_b32 s58, hwreg(HW_REG_XCC_ID)", "s_nop 3", "v_writelane_b32 v1, s58, 23")
        a("s_lshl_b32 s58, s2, 2", "s_add_u32 s58, s58, s36", "s_lshl_b32 s58, s58, 8")
        a("v_lshl_add_u32 v61, v0, 2, s58", "global_store_dword v61, v1, s[16:17]", "s_waitcnt vmcnt(0)")
    if helper and not hnear:
        a("s_endpgm", "L_HELPER:")
        (helper_h4 if arr else helper_h2)(a, **helper)
    a("L_END:")
    return dict(label=NAME+"_kernel", body=a.text(), grid=nwg, block=256, lds=LDS, vgpr=256 + 2*FSZ, accum=256)

if __name__ == "__main__":
    kw = eval("dict(" + (sys.argv[2] if len(sys.argv) > 2 else "") + ")")
    open(sys.argv[1], "w").write(file_text([gen(**kw)]))
```

```python
class I:
    def __init__(s, text, kind="x", tag=None, need=()):
        s.text = text; s.kind = kind; s.tag = tag; s.need = tuple(need)
def lds(text, tag=None, need=()): return I(text, "lds", tag, need)
def vm(text, tag=None, need=()): return I(text, "vm", tag, need)
def op(text, need=()): return I(text, "x", None, need)
def wait(l=None, v=None):
    w = I("", "wait"); w.l = l; w.v = v; return w

def resolve(seq, prev=None, check=True):
    hist = {"lds": [], "vm": []}; done = {"lds": 0, "vm": 0}
    def run(sq, emit):
        out = []
        for x in sq:
            if x.kind == "wait":
                parts = []
                for k, t, nm, mx in (("vm", x.v, "vmcnt", 63), ("lds", x.l, "lgkmcnt", 15)):
                    if t is None: continue
                    h = hist[k]
                    if t == "all": n = 0
                    else:
                        idx = [i for i, y in enumerate(h) if y == t]
                        if not idx:
                            assert not emit, f"wait on unknown tag {t}"
                            continue
                        n = len(h) - 1 - idx[-1]
                    n = min(n, mx)
                    done[k] = max(done[k], len(h) - n)
                    parts.append(f"{nm}({n})")
                if parts: out.append("s_waitcnt " + " ".join(parts))
                continue
            if emit and check:
                for t in x.need:
                    found = False
                    for k in hist:
                        idx = [i for i, y in enumerate(hist[k]) if y == t]
                        if idx:
                            found = True
                            assert idx[-1] < done[k], f"'{x.text}' needs {t} which is not waited for"
                    assert found, f"'{x.text}' needs unknown tag {t}"
            if x.kind in hist: hist[x.kind].append(x.tag)
            out.append(x.text)
        return out
    if prev: run(prev, False)
    return run(seq, True)

def place(mf, slots):
    out = list(slots.get(-1, []))
    for i, m in enumerate(mf):
        out.append(m); out += slots.get(i, [])
    return out

def scc_check(lines):
    last = None
    for l in "\n".join(lines).split("\n"):
        o = l.split()[0] if l.split() else ""
        if o in ("s_cselect_b32", "s_cselect_b64", "s_cbranch_scc1", "s_cbranch_scc0"):
            assert last and (last.startswith("s_cmp") or last.startswith("s_bitcmp")), f"{l}: SCC comes from {last}"
        if o == "s_addc_u32":
            assert last and last.startswith("s_add_u32") and int(last.split()[1][1:-1]) + 1 == int(l.split()[1][1:-1]), f"{l}: SCC comes from {last}"
        if o.startswith("s_") and not any(o.startswith(p) for p in ("s_waitcnt", "s_barrier", "s_nop", "s_mov", "s_cselect", "s_cbranch", "s_branch", "s_mem", "s_mul_i32", "s_setprio", "s_sleep", "s_load")):
            last = l
```

```python
class Op:
    def __init__(s, text, kind, tag=None, need=()):
        s.text = text; s.kind = kind; s.tag = tag; s.need = tuple(need)
class TL:
    def __init__(s, mf, pre=256, post=0):
        s.mf = mf; s.n = len(mf); s.lo = -pre; s.hi = s.n + post
        s.resv = lambda g: g % 4 == 3
        s.sc = {}; s.mem = {}; s.va = {}; s.full = set(); s.pos = {}; s.raw = {}
    def _g(s, d, g): return d.setdefault(g, [])
    def used(s, g): return len(s._g(s.mem, g)) + len(s._g(s.va, g)) + max(0, len(s._g(s.sc, g)) - 1)
    def ok(s, x, g):
        k = x.kind; mem = s._g(s.mem, g); va = s._g(s.va, g); sc = s._g(s.sc, g)
        hasv = any(y.kind in ("vm", "st") for y in mem); scal = bool(sc) or s.resv(g)
        if g in s.full: return False
        if k == "br": return not mem and not va and not scal
        if k == "sc": return not scal and not (hasv and va) and not any(y.kind == "st" for y in mem)
        if k == "st": return not mem and len(va) <= 1 and not scal
        if s.used(g) >= 2: return False
        if k == "ds": return not any(y.kind in ("ds", "st") for y in mem)
        if k == "vm": return not hasv and not (va and scal)
        return not (hasv and scal)
    def put(s, x, g, lim=None, back=False, force=False):
        g0 = g
        while not force and not s.ok(x, g):
            g += -1 if back else 1
            assert lim is None or (g >= lim if back else g <= lim), f"cannot place '{x.text}' from {g0} to {lim}"
        assert s.lo <= g < s.hi, (x.text, g)
        d = s.sc if x.kind in ("sc", "br") else s.va if x.kind == "va" else s.mem
        if back: s._g(d, g).insert(0, x)
        else: s._g(d, g).append(x)
        if x.kind == "br": s.full.add(g)
        if x.tag: s.pos[x.tag] = g
        return g
    def emit(s, lat=5, vlat=40, head=()):
        seq = []
        for x in head: seq.append((s.lo - 1, 2, x))
        for g in range(s.lo, s.hi):
            if 0 <= g < s.n and s.mf[g] is not None: seq.append((g, 0, s.mf[g]))
            seq.append((g, 1, None))
            for x in s._g(s.sc, g): seq.append((g, 1, x))
            for x in sorted(s._g(s.mem, g), key=lambda y: y.kind != "ds") + s._g(s.va, g) + s.raw.get(g, []): seq.append((g, 2, x))
        cls = lambda x: {"ds": "l", "vm": "v", "st": "v"}.get(x.kind)
        hist = {"l": [], "v": []}; done = {"l": 0, "v": 0}; where = {}
        out = []; stats = {"waits": 0, "extra": 0}
        def dowait(tags, g, exact=False):
            parts = []
            for k, nm, mx, la in (("v", "vmcnt", 63, vlat), ("l", "lgkmcnt", 15, lat)):
                idx = [where[t][1] for t in tags if where[t][0] == k and where[t][1] >= done[k]]
                if not idx: continue
                i = max(idx)
                if not exact:
                    while i + 1 < len(hist[k]) and hist[k][i + 1][0] <= g - la and hist[k][i + 1][1] != "st": i += 1
                n = min(len(hist[k]) - 1 - i, mx); done[k] = len(hist[k]) - n
                parts.append(f"{nm}({n})")
            if parts: out.append("s_waitcnt " + " ".join(parts)); stats["waits"] += 1
            return bool(parts)
        for i, (g, slot, x) in enumerate(seq):
            if x is None:
                tags = []
                for (g2, sl2, y) in seq[i + 1:]:
                    if y is None: break
                    tags += [t for t in y.need]
                for t in tags: assert t in where, f"gap {g}: tag {t} needed before it is issued"
                if dowait(tags, g) and s.sc[g] and s.used(g) >= 2 and 0 <= g < s.n: stats["extra"] += 1
                continue
            if g < s.lo:
                for t in x.need: assert t in where, t
                dowait(x.need, g, True)
            for t in x.need: assert where[t][1] < done[where[t][0]], (x.text, t)
            k = cls(x)
            if k:
                if x.tag: where[x.tag] = (k, len(hist[k]))
                hist[k].append((g, x.kind))
            out.append(x.text)
        s.stats = stats
        return out
```

```python
from common import *
from sched import *
import sys

M, K, N = 2048, 1024, 3584
A_ST = 0x8000; B_BASE = 0x10000; B_ST = 0x4000; LUT_BASE = 0x18000; LDS = 0x20000
NF4 = [0xBF80, 0xBF32, 0xBF06, 0xBECA, 0xBE92, 0xBE3D, 0xBDBA, 0x0000, 0x3DA3, 0x3E25, 0x3E7C, 0x3EAD, 0x3EE2, 0x3F10, 0x3F39, 0x3F80]

class E:
    def __init__(s): s.L = []
    def __call__(s, *xs):
        for x in xs: s.L.append(x)
    def text(s): return "\n".join(s.L)

class Gaps:
    def __init__(s, n=64):
        s.n = n; s.sc = [[] for _ in range(n)]; s.mem = [[] for _ in range(n)]; s.va = [[] for _ in range(n)]
        s.nods = set(); s.full = set()
    def used(s, g): return len(s.mem[g]) + len(s.va[g]) + max(0, len(s.sc[g]) - 1)
    def ok(s, cls, g, x=None):
        if cls == "sc": return len(s.sc[g]) == 0
        if cls == "wr": return s.used(g) == 0
        if cls == "ds": return g not in s.full and g not in s.nods and s.used(g) < 2 and not any(y.kind == "lds" for y in s.mem[g])
        return g not in s.full and s.used(g) < 2
    def put(s, cls, x, target, hi=None, back=False):
        g = target
        while True:
            if back: assert g >= 0 and (hi is None or g >= hi), f"cannot place {x.text or 'wait'} in [{hi},{target}]"
            else: assert g < s.n and (hi is None or g <= hi), f"cannot place {x.text or 'wait'} in [{target},{hi}]"
            if cls == "sc" and x.kind == "wait" and s.sc[g] and s.sc[g][0].kind == "wait":
                w = s.sc[g][0]
                if (w.l is None or x.l is None) and (w.v is None or x.v is None):
                    w.l = w.l or x.l; w.v = w.v or x.v; return g
            if s.ok(cls, g): break
            g += -1 if back else 1
        if cls == "sc": s.sc[g].append(x)
        elif cls == "va": s.va[g].append(x)
        else: s.mem[g].append(x)
        if cls == "wr": s.full.add(g)
        return g
    def slots(s): return {g: s.sc[g] + s.mem[g] + s.va[g] for g in range(s.n)}

def helper_h2(a, s0=1, flags="", code=False):
    a("s_add_u32 s41, s41, 4", "s_lshl2_add_u32 s41, s41, s36")
    a("v_and_b32 v0, 63, v0", "s_bfe_u32 s42, s2, 0x10002", f"s_mov_b32 s22, {M*K*2}", "s_mov_b32 s23, 0x20000")
    if code:
        a("s_getpc_b64 s[48:49]", "L_PC:", f"s_sub_u32 s48, s48, L_PC-{NAME}_kernel", "s_subb_u32 s49, s49, 0")
        a("v_and_b32 v4, 3, v0", "s_lshl_b32 s45, s41, 9", "v_lshl_add_u32 v4, v4, 7, s45", f"v_min_u32 v4, L_PC-{NAME}_kernel, v4", "global_load_dword v7, v4, s[48:49]")
    a("v_min_u32 v2, 55, v0", "v_cmp_lt_u32 vcc, 27, v2", "v_lshlrev_b32 v2, 7, v2", f"v_mov_b32 v3, {14336 - 28*128}", "v_cndmask_b32 v3, 0, v3, vcc", "v_add_u32 v2, v2, v3")
    a("s_lshl_b32 s45, s42, 4", "s_add_u32 s45, s45, s41", f"s_mul_i32 s45, s45, {2*14336}", "s_mul_i32 s46, s43, 3584", "s_add_u32 s45, s45, s46", "v_add_u32 v2, s45, v2")
    a("v_lshrrev_b32 v3, 2, v0", "v_and_b32 v4, 3, v0", "v_lshlrev_b32 v3, 11, v3", "v_lshl_add_u32 v3, v4, 7, v3")
    a("s_lshl2_add_u32 s45, s42, s43", "s_lshl4_add_u32 s45, s45, s41", "s_lshl_b32 s45, s45, 15", "v_add_u32 v3, s45, v3")
    a(f"s_mov_b32 s50, {s0*64*14336}")
    a("s_waitcnt lgkmcnt(0)")
    a("s_mov_b64 s[24:25], s[6:7]", "s_mov_b64 s[20:21], s[4:5]")
    a(f"buffer_load_dword v8, v3, s[20:23], 0 offen {flags}")
    for s in range(s0, 4):
        a(f"buffer_load_dword v9, v2, s[24:27], s50 offen {flags}", f"s_add_u32 s50, s50, {64*14336}")
    a("L_HLOOP:")
    a("v_add_u32 v3, 512, v3")
    a(f"buffer_load_dword v8, v3, s[20:23], 0 offen {flags}")
    for s in range(4):
        a(f"buffer_load_dword v9, v2, s[24:27], s50 offen {flags}", f"s_add_u32 s50, s50, {64*14336}")
    a(f"s_cmp_lt_u32 s50, {K*N*4}", "s_cbranch_scc1 L_HLOOP")
    a("s_waitcnt vmcnt(0)")

def helper_h4(a, s0=1, flags="", code=False, xs=(), xlead=1):
    a("s_add_u32 s41, s41, 4", "s_lshl2_add_u32 s41, s41, s36")
    a("v_and_b32 v0, 63, v0", "s_bfe_u32 s42, s2, 0x10002", f"s_mov_b32 s22, {M*K*2}", "s_mov_b32 s23, 0x20000")
    if code:
        a("s_getpc_b64 s[48:49]", "L_PC:", f"s_sub_u32 s48, s48, L_PC-{NAME}_kernel", "s_subb_u32 s49, s49, 0")
        a("v_and_b32 v4, 3, v0", "s_lshl_b32 s45, s41, 9", "v_lshl_add_u32 v4, v4, 7, s45", f"v_min_u32 v4, L_PC-{NAME}_kernel, v4", "global_load_dword v7, v4, s[48:49]")
    a("v_lshrrev_b32 v2, 4, v0", "v_and_b32 v3, 15, v0", "v_mul_u32_u24 v2, 14336, v2", "v_lshl_add_u32 v2, v3, 7, v2")
    a(f"s_mul_i32 s45, s41, {4*14336}", "s_mul_i32 s46, s40, 7", "s_lshr_b32 s46, s46, 1", "s_lshl_b32 s46, s46, 9", "s_add_u32 s45, s45, s46", "v_add_u32 v2, s45, v2")
    a("v_lshrrev_b32 v3, 2, v0", "v_and_b32 v4, 3, v0", "v_lshlrev_b32 v3, 11, v3", "v_lshl_add_u32 v3, v4, 7, v3")
    a("s_lshl4_add_u32 s45, s40, s41", "s_lshl_b32 s45, s45, 15", "v_add_u32 v3, s45, v3")
    if xs: a("s_lshl_b32 s45, s41, 17", "v_lshl_add_u32 v4, v0, 11, s45", "s_mov_b32 s51, 0x200000")
    a(f"s_mov_b32 s50, {s0*64*14336}")
    a("s_waitcnt lgkmcnt(0)")
    a("s_mov_b64 s[24:25], s[6:7]", "s_mov_b64 s[20:21], s[4:5]")
    a(f"buffer_load_dword v8, v3, s[20:23], 0 offen {flags}")
    for s in range(16):
        if (s + xlead) % 4 == 0 and 0 < s + xlead < 16: a(f"buffer_load_dword v8, v3, s[20:23], 0 offen offset:{(s+xlead)*128} {flags}")
        if s >= s0: a(f"buffer_load_dword v9, v2, s[24:27], s50 offen {flags}", f"s_add_u32 s50, s50, {64*14336}")
        if s in xs: a(f"buffer_load_dword v8, v4, s[20:23], 0 offen offset:{s*128} {flags}", f"buffer_load_dword v8, v4, s[20:23], s51 offen offset:{s*128} {flags}")
    a("s_waitcnt vmcnt(0)")

def gen(arr=0, cpf=1, early=4, earlyb=0, hnear=1, pad=0, diag=0, helper=dict(s0=1), store_flags="nt", exp="", tau=8, phi=43, om=42, wrs=4, quiet=3, orpos=None, lat=5):
    a = E()
    sX, sQ, sO = 20, 24, 28
    def srd(r): return f"s[{r}:{r+3}]"
    nwg = 256 if helper else 224
    def stamp(idx):
        if diag:
            a(f"s_memrealtime s[{60+2*idx}:{61+2*idx}]")
            if idx in (1, 2): a(f"s_memtime s[{70+2*idx}:{71+2*idx}]")
    ACC = 128; R = 32; T = 64; W = 96; RP = ACC + 64
    NM, NN, AW = 4, 8, 4
    FSZ = 48; F = [0, FSZ]
    vAo, vBo, vA, vB, vO, vL, vW, vSc = 8, 16, 24, 26, 28, 29, 30, 112
    vp = [(phi + 4 * i) for i in range(16)]
    nhead = sum(1 for i in range(16) if vp[i] < 64)
    stamp(0)
    a("s_load_dwordx4 s[4:7], s[0:1], 0", "s_load_dwordx4 s[8:11], s[0:1], 24")
    if cpf:
        a("s_getpc_b64 s[48:49]", "L_PC0:", "v_lshlrev_b32 v2, 7, v0", "v_min_u32 v2, L_END-L_PC0, v2", "global_load_dword v7, v2, s[48:49]")
    if diag: a("s_load_dwordx2 s[16:17], s[0:1], 48")
    a(f"s_cmp_ge_u32 s2, {nwg}", "s_cbranch_scc1 L_END")
    a("v_lshrrev_b32 v1, 6, v0", "v_lshrrev_b32 v5, 5, v0", "v_and_b32 v3, 31, v0")
    a("v_readfirstlane_b32 s36, v1")
    a("s_and_b32 s40, s2, 7" if arr else "s_and_b32 s43, s2, 3", "s_lshr_b32 s41, s2, 3")
    a(f"s_mov_b32 s{sQ+2}, {K*N*4}", f"s_mov_b32 s{sQ+3}, 0x20000")
    if helper: a("s_sub_u32 s41, s41, 4", "s_cbranch_scc1 L_HELPER")
    if arr: a("s_mul_i32 s44, s40, 28", "s_add_u32 s41, s41, s44", "s_lshr_b32 s38, s41, 3")
    else: a("s_lshr_b32 s38, s41, 2", "s_mul_i32 s44, s43, 7", "s_add_u32 s38, s38, s44")
    a("v_mul_u32_u24 v2, %d, v5" % (8*14336), "s_lshl_b32 s50, s38, 9", f"v_lshl_add_u32 v{vBo}, v3, 4, v2")
    a("s_movk_i32 s47, 0x3800")
    for j in range(1, 8): a(f"v_add_u32 v{vBo+j}, s47, v{vBo+j-1}")
    a("s_waitcnt lgkmcnt(0)")
    a(f"s_mov_b64 s[{sQ}:{sQ+1}], s[6:7]")
    P = []
    xs = [0]
    def xstamp(k=3):
        if diag != k: return []
        xs[0] += 1
        return [op(f"s_memrealtime s[{76+2*xs[0]}:{77+2*xs[0]}]")]
    P += xstamp()
    def bload(j): return vm(f"buffer_load_dwordx4 v[{R+4*j}:{R+4*j+3}], v{vBo+j}, {srd(sQ)}, s50 offen", f"B{j}")
    def adma(j, need=()): return vm(f"buffer_load_dwordx4 v{vAo+j}, {srd(sX)}, s51 offen offset:{(j&3)*1024} lds", f"A{j}", need)
    mA = op("s_xor_b32 m0, m0, 0x1000"); mB = op(f"s_xor_b32 m0, m0, {A_ST + 0x1000}")
    P += [bload(j) for j in range(8)]
    if helper and hnear:
        h = E(); h("s_branch L_MAIN", "L_HELPER:"); (helper_h4 if arr else helper_h2)(h, **helper)
        if diag:
            h("s_memrealtime s[62:63]", "s_waitcnt lgkmcnt(0)", "v_mov_b32 v1, 0", "s_nop 1", "v_writelane_b32 v1, s60, 48", "v_writelane_b32 v1, s62, 49")
            h("s_lshl_b32 s58, s2, 2", "s_add_u32 s58, s58, s36", "s_lshl_b32 s58, s58, 8")
            h("v_lshl_add_u32 v61, v0, 2, s58", "global_store_dword v61, v1, s[16:17]", "s_waitcnt vmcnt(0)")
        h("s_endpgm", "L_MAIN:")
        P += [op(h.text())]
    P += xstamp()
    LT = 64
    lb = [f"v_mov_b32 v2, {NF4[0] | NF4[8] << 16:#x}"]
    for j in range(1, 8): lb += ["s_lshl_b64 exec, exec, 8", f"v_mov_b32 v2, {NF4[j] | NF4[8+j] << 16:#x}"]
    lb += ["s_mov_b64 exec, -1",
           "s_and_b32 s45, s36, 1", "s_mul_i32 s45, s45, 0x0202", "s_lshr_b32 s46, s36, 1", "s_mul_i32 s46, s46, 0x02020000",
           "s_add_u32 s45, s45, s46", "s_add_u32 s45, s45, 0x05040100", "v_mov_b32 v4, s45",
           f"s_mov_b32 s44, {LUT_BASE}", "v_lshl_add_u32 v31, v0, 4, s44", "v_mov_b64 v[116:117], 0", "v_mov_b64 v[118:119], 0"]
    P += [op(x) for x in lb]
    def lutv(j):
        q = LT + 4 * j
        return [op(f"s_mov_b32 s45, {NF4[2*j] | NF4[2*j+1] << 16:#x}"), op(f"v_perm_b32 v{q}, s45, v2, v4"), op(f"v_mov_b32 v{q+1}, v{q}"), op(f"v_mov_b64 v[{q+2}:{q+3}], v[{q}:{q+1}]")]
    pre = [f"v_lshl_add_u32 v{vL}, v3, 2, s44",
           f"s_mov_b64 s[{sX}:{sX+1}], s[4:5]", f"s_mov_b32 s{sX+2}, {M*K*2}", f"s_mov_b32 s{sX+3}, 0x20000", "s_mov_b32 s51, 0",
           *(["s_and_b32 s37, s41, 7"] if arr else ["s_bfe_u32 s42, s2, 0x10002", "s_and_b32 s37, s41, 3", "s_lshl2_add_u32 s37, s42, s37"]), "s_lshl2_add_u32 s37, s37, s36",
           "v_and_b32 v120, 1, v5", "v_xor_b32 v3, v3, v120", "v_lshlrev_b32 v120, 4, v3", "v_lshl_add_u32 v120, v5, 11, v120", f"v_add_u32 v{vW}, {B_BASE}, v120",
           "v_and_b32 v0, 63, v0",
           "s_lshl_b32 s46, s37, 17", "v_lshrrev_b32 v6, 3, v0",
           "v_lshl_add_u32 v120, v6, 11, s46", "v_and_b32 v121, 7, v0", "v_lshrrev_b32 v6, 4, v0", "v_xor_b32 v121, v121, v6",
           f"v_lshl_add_u32 v{vAo}, v121, 4, v120", f"v_xor_b32 v121, 64, v{vAo}"]
    pre += [f"v_add_u32 v{vAo+j}, {j*16384 - (j&3)*1024}, v{121 if j&1 else vAo}" for j in range(1, 8)]
    pre += ["s_lshl_b32 m0, s36, 13", "v_and_b32 v3, 15, v0", "s_lshl_b32 s46, s38, 8", "v_lshl_add_u32 v122, v3, 4, s46", f"s_add_u32 s50, s50, {64*14336}"]
    post = [f"s_mov_b64 s[{sO}:{sO+1}], s[10:11]", f"s_mov_b32 s{sO+2}, {M*N*2}", f"s_mov_b32 s{sO+3}, 0x20000",
           "s_lshl_b32 s47, s37, 6", "v_and_b32 v121, 1, v6",
           "v_lshl_add_u32 v120, v6, 2, s47", "v_mul_u32_u24 v120, 7168, v120", f"v_add_u32 v{vO}, v120, v122",
           "s_lshl_b32 s47, s36, 13", "v_lshl_add_u32 v120, v3, 7, s47",
           "v_bfe_u32 v5, v0, 1, 3", "v_xor_b32 v5, v5, v6", f"v_lshl_add_u32 v{vA}, v5, 4, v120",
           f"v_xor_b32 v{vA+1}, 64, v{vA}",
           "v_lshl_add_u32 v120, v3, 1, v121", "v_lshlrev_b32 v120, 4, v120", "v_lshl_add_u32 v120, v6, 11, v120", f"v_add_u32 v{vB}, {B_BASE}, v120",
           f"v_xor_b32 v{vB+1}, 16, v{vB}"]
    pre = [op(x) for x in pre]; post = [op(x) for x in post]
    def zero(t): return op(f"v_mfma_f32_32x32x16_bf16 v[{ACC+16*t}:{ACC+16*t+15}], v[116:119], v[116:119], 0")
    P += lutv(0)
    for j in range(8):
        P += [zero(j), lds(f"ds_write_b128 v31, v[{LT+4*j}:{LT+4*j+3}] offset:{j*4096}")]
        if j < 7: P += lutv(j + 1)
        P += pre[3*j:3*j+3] if j < 7 else pre[21:]
    P += xstamp()
    A0 = [adma(j) for j in range(8)]
    P += A0[:early] + ([mA] if early == 4 else []) + post
    P += [wait(l="all"), op("s_barrier")] + xstamp()
    def d_or(jp, h):
        d = T + 4*jp + 2*h; s1 = R + 4*(2*jp+1) + 2*h; s0 = R + 4*(2*jp) + 2*h
        return op(f"v_lshl_add_u64 v[{d}:{d+1}], v[{s1}:{s1+1}], 4, v[{s0}:{s0+1}]", [f"B{2*jp}", f"B{2*jp+1}"])
    def d_add(jp, c): return op(f"v_lshl_add_u32 v{W+4*c+jp}, v{T+4*jp+c}, 7, v{vL}")
    def d_lut(jp, c): return lds(f"ds_read_b32 v{W+4*c+jp}, v{W+4*c+jp}", f"L{jp}{c}")
    def d_wr(c, st): return lds(f"ds_write_b128 v{vW}, v[{W+4*c}:{W+4*c+3}] offset:{st*B_ST + c*512}", f"W{c}", [f"L{jp}{c}" for jp in range(4)])
    na = early
    for jp in range(4):
        P += [wait(v=f"B{2*jp+1}"), d_or(jp, 0), d_or(jp, 1)] + [d_add(jp, c) for c in range(4)] + [d_lut(jp, c) for c in range(4)]
        P += A0[na:na+2]; na += 2
        if na == 4: P += [mA]
    B1 = [vm(f"global_load_dwordx4 v[{vSc}:{vSc+3}], v122, s[8:9]", "SC")] + [bload(j) for j in range(8)]
    P += B1[:earlyb]
    P += xstamp() + [wait(l="all")] + [d_wr(c, 0) for c in range(4)] + xstamp()
    P += B1[earlyb:]
    P += [mB, op("s_add_u32 s51, s51, 128"), op(f"s_add_u32 s50, s50, {64*14336}")]
    P += xstamp()

    def rdA(ks, m, u): return lds(f"ds_read_b128 a[{F[ks]+4*m}:{F[ks]+4*m+3}], v{vA+ks} offset:{u*A_ST + m*2048}", f"fa{ks}{m}", ["A7o"] if ks == 0 and m == 0 else [])
    def rdB(ks, t, u): return lds(f"ds_read_b128 a[{F[ks]+16+4*t}:{F[ks]+19+4*t}], v{vB+(t>>2)} offset:{u*B_ST + ks*8192 + (t&3)*512}", f"fb{ks}{t}")
    def mfmas(ks):
        f = F[ks]; r = []
        for m, t in [(mm if t % 2 == 0 else NM-1-mm, t) for t in range(NN) for mm in range(NM)]:
            d = ACC + (m*NN + t) * AW
            r.append(op(f"v_mfma_f32_16x16x32_bf16 v[{d}:{d+3}], a[{f+4*m}:{f+4*m+3}], a[{f+16+4*t}:{f+19+4*t}], v[{d}:{d+3}]", [f"fa{ks}{m}", f"fb{ks}{t}"]))
        return r
    mf = mfmas(1)[32-tau:] + mfmas(0) + mfmas(1)[:32-tau]
    def step(u):
        g = Gaps()
        dqon = "nodq" not in exp; wron = dqon and "nowr" not in exp
        g.put("sc", op("s_barrier"), 0, 0)
        wend = om
        if wron:
            for c in range(4):
                p = g.put("wr", d_wr(c, 1 - u), om + wrs*c, om + wrs*c)
                for q in range(1, quiet + 1): g.nods.add(p + q)
        wend = om + wrs*3 + quiet + 1
        bp = {}; ap = {}
        for i in range(16):
            p = vp[i] % 64
            if i < 8:
                if "noa" not in exp: p = g.put("vm", adma(i, ["fa13"] if vp[i] < 64 else []), p, p + 1)
                ap[i] = p
            else:
                if "nob" not in exp: p = g.put("vm", bload(i - 8), p, p + 1)
                bp[i - 8] = p
        orp = orpos or [min(bp[2*jp] - 2, om - 14) if bp[2*jp] < om else bp[2*jp] - 2 for jp in range(4)]
        jobs = []
        for t in range(8):
            jobs.append([0, tau + 4*t - lat - 1, rdB(0, t, u)])
            jobs.append([max(0, tau + 32 + 4*t + 3 - 64), min(om - 1, tau + 32 + 4*t - lat - 1), rdB(1, t, u)])
        for m in range(4): jobs.append([tau - 1, min(tau + 32, phi) - lat - 1, rdA(1, m, u)])
        vq = []
        if dqon:
            for jp in range(4):
                late = orp[jp] >= om
                if late:
                    oq = [g.put("va", d_or(jp, h), orp[jp] + 1, None, back=True) for h in (1, 0)]
                    if "nob" not in exp: g.put("sc", wait(v=f"B{2*jp+1}"), min(oq), None, back=True)
                else:
                    vq += [[orp[jp] - 1, d_or(jp, h), jp if h == 0 else None, bp[2*jp] - 1] for h in range(2)]
                for c in range(4):
                    vq.append([0, d_add(jp, c), [0, om - lat + c - (3 - jp) * 4, d_lut(jp, c)], om])
        pos = {}
        for q in range(om):
            cand = [j for j in jobs if j[0] <= q]
            if cand and g.ok("ds", q):
                j = min(cand, key=lambda j: j[1]); jobs.remove(j); g.put("ds", j[2], q, q); pos[j[2].tag] = q
            while vq and vq[0][0] <= q and g.ok("va", q):
                rel, x, job, dl = vq.pop(0)
                assert q <= dl, x.text
                g.put("va", x, q, q)
                if isinstance(job, list): job[0] = q + 1; jobs.append(job)
                elif job is not None and "nob" not in exp: g.put("sc", wait(v=f"B{2*job+1}"), q, None, back=True)
        assert not jobs and not vq, [j[2].text for j in jobs]
        p = wend
        for m in range(4): p = g.put("ds", rdA(0, m, 1 - u), p, 63); pos[f"fa0{m}"] = p - 64
        pa0 = pos["fa00"] + 64
        order = sorted(pos, key=lambda t: pos[t]); covered = -99
        needs = []
        for i, x in enumerate(mf):
            for t in x.need:
                if i >= tau: needs.append((i - 1, t))
        if wron: needs += [(om + wrs*c, f"L{jp}{c}") for c in range(4) for jp in range(4)]
        needs += [(ap[0], f"fa1{m}") for m in range(4)]
        for q, t in sorted(needs):
            if pos[t] <= covered: continue
            best = [y for y in order if pos[y] <= max(pos[t], q - lat)][-1]
            covered = pos[best]
            g.put("sc", wait(l=best), q, pos[best] + 1, back=True)
        if "noa" not in exp:
            w = wait(v="A7" if ap[7] < ap[0] or ap[7] >= pa0 else "B0"); g.put("sc", w, pa0, None, back=True)
        g.put("sc", wait(l="W3" if wron else "fb17"), 62, 62)
        cr = "s52" if "samek" in exp else "s51"
        qa = g.put("sc", mA, (ap[3] + 1) % 64, (ap[4] - 1) % 64)
        q = g.put("sc", mB, ap[7] + 1 if ap[7] < ap[0] else 1, ap[0] - 1)
        q = g.put("sc", op(f"s_add_u32 {cr}, {cr}, 128"), q + 1, ap[0] - 1)
        if u == 0:
            q = g.put("sc", op(f"s_cmp_lt_u32 {cr}, 2048"), q + 1, ap[0] - 1)
            q = g.put("sc", op(f"s_cselect_b32 s{sX+2}, {M*K*2}, 0"), q + 1, ap[0] - 1)
        qb = g.put("sc", op(f"s_add_u32 s50, s50, {0 if 'samek' in exp else 64*14336}"), max(q, bp[7]) + 1, (bp[0] - 1) if bp[0] > bp[7] else 63)
        if u == 1: g.put("sc", op(f"s_cmp_lt_u32 {cr}, {17*128}"), max(qa if qa > 32 else 0, qb) + 1, 63)
        if pad: g.sc[63].append(op("\n".join(["s_nop 15"] * pad)))
        if diag == 2:
            g.put("sc", op("s_memtime s[58:59]"), 1); g.put("sc", op("s_memrealtime s[56:57]"), 2)
            g.put("va", op("v_mov_b32_dpp v1, v1 row_shr:1 row_mask:0x5 bank_mask:0xf"), 44)
            g.put("va", op("v_writelane_b32 v1, s58, 0"), 48); g.put("va", op("v_writelane_b32 v1, s56, 32"), 49)
        return g.slots(), ap
    (s0, ap), (s1, _) = step(0), step(1)
    for sl in (s0, s1):
        for v in sl.values():
            for x in v:
                if "A7o" in x.need: x.need = ("A7",) if (ap[7] < ap[0]) else ()
    mfx = [op("s_nop 0") for _ in mf] if "nomfma" in exp else mf
    h0 = place(mfx[:tau], {g: v for g, v in s0.items() if g < tau})
    rest = place(mfx[tau:], {g - tau: v for g, v in s0.items() if g >= tau}) + place(mfx, s1)
    if "samek" in exp: P += [op("s_mov_b32 s52, 128")]
    for g in range(min(ap[0], om), 64):
        for x in s1[g]:
            if x.kind == "vm" and g >= ap[0]: P.append(vm(x.text, x.tag))
            elif x is mA: P += [x, op("s_nop 0")]
            elif g >= om and (x.text.startswith("v_lshl_add") or x.text.startswith("ds_read")): P.append(x)
            elif g >= om and x.kind == "wait": P.append(wait(l=x.l if x.l == "W3" else None, v=x.v))
    peel = [x for g in range(tau) for x in s0[g]]
    chk = exp in ("", "samek")
    tP = resolve(P, check=chk); tE = resolve(peel, prev=P, check=chk)
    t1 = resolve(rest, prev=P + peel, check=chk)
    t2 = resolve(h0 + rest, prev=P + peel + rest, check=chk)
    if chk:
        t3 = resolve(h0 + rest, prev=h0 + rest + h0 + rest)
        assert t2 == t3 and t2[-len(t1):] == t1, "wait counts differ between entry paths"
    else: t1 = t2[-len(t1):]
    a(*tP); a(tE[0]); stamp(1); a(*tE[1:])
    a(*[x.text for x in xstamp()]); a("s_branch L_ENTRY")
    a(".p2align 6")
    a("L_LOOP:"); a(*t2[:len(t2) - len(t1)])
    a("L_ENTRY:"); a(*t1)
    a("s_cbranch_scc1 L_LOOP")
    SC = 80
    sc = []
    for h in range(NN // 2):
        sc += [op(f"v_lshlrev_b32 v{SC+2*h}, 16, v{vSc+h}"), op(f"v_and_b32 v{SC+2*h+1}, 0xffff0000, v{vSc+h}")]
    a(*[x.text for x in place(mf[:tau], {i: sc[2*i:2*i+2] for i in range(4)})])
    stamp(2)
    a("s_waitcnt vmcnt(0) lgkmcnt(0)", "s_nop 1")
    n = 0
    for m in range(NM):
        for r in range(0, AW, 2):
            for t in range(NN):
                d = ACC + (m*NN + t) * AW + r; s_ = SC + (t & ~1)
                sel = "op_sel:[0,1] op_sel_hi:[1,1]" if t & 1 else "op_sel:[0,0] op_sel_hi:[1,0]"
                if "nomul" not in exp: a(f"v_pk_mul_f32 v[{d}:{d+1}], v[{d}:{d+1}], v[{s_}:{s_+1}] {sel}")
            for rr in range(2):
                q = 32 + 4 * (n % 8); n += 1
                for h in range(4):
                    a(f"v_cvt_pk_bf16_f32 v{q+h}, v{ACC+(m*NN+2*h)*AW+r+rr}, v{ACC+(m*NN+2*h+1)*AW+r+rr}")
                a(f"s_mov_b32 s56, {(16*m + r + rr) * 7168}")
                a(f"buffer_store_dwordx4 v[{q}:{q+3}], v{vO}, {srd(sO)}, s56 offen {store_flags}")
    if diag:
        stamp(3); a("s_waitcnt vmcnt(0)"); stamp(4)
        a("s_waitcnt lgkmcnt(0)")
        for i in range(5): a(f"v_writelane_b32 v1, s{60+2*i}, {16+i}")
        for i in range(xs[0]): a(f"v_writelane_b32 v1, s{78+2*i}, {24+i}")
        a("v_writelane_b32 v1, s72, 21", "v_writelane_b32 v1, s74, 22")
        a("s_getreg_b32 s58, hwreg(HW_REG_XCC_ID)", "s_nop 3", "v_writelane_b32 v1, s58, 23")
        a("s_lshl_b32 s58, s2, 2", "s_add_u32 s58, s58, s36", "s_lshl_b32 s58, s58, 8")
        a("v_lshl_add_u32 v61, v0, 2, s58", "global_store_dword v61, v1, s[16:17]", "s_waitcnt vmcnt(0)")
    if helper and not hnear:
        a("s_endpgm", "L_HELPER:")
        (helper_h4 if arr else helper_h2)(a, **helper)
    a("L_END:")
    return dict(label=NAME+"_kernel", body=a.text(), grid=nwg, block=256, lds=LDS, vgpr=256 + 2*FSZ, accum=256)

if __name__ == "__main__":
    kw = eval("dict(" + (sys.argv[2] if len(sys.argv) > 2 else "") + ")")
    open(sys.argv[1], "w").write(file_text([gen(**kw)]))
```

```python
from common import *
from sched import *
from v4 import E, Gaps, NF4
import sys
M, K, N = 2048, 1024, 3584
A_ST = 0x4000; LUT_BASE = 0x10000; LDS = 0x20000

def pack_kernel():
    a = E()
    a("s_cmp_ge_u32 s2, 448", "s_cbranch_scc1 PK_END")
    a("s_load_dwordx2 s[4:5], s[0:1], 8", "s_load_dwordx2 s[8:9], s[0:1], 48")
    a("v_lshrrev_b32 v1, 6, v0", "v_and_b32 v0, 63, v0", "s_nop 0", "v_readfirstlane_b32 s36, v1")
    a("s_lshl2_add_u32 s37, s2, s36")
    a("s_mul_i32 s38, s37, 18725", "s_lshr_b32 s38, s38, 20")
    a("s_mul_i32 s39, s38, 56", "s_sub_u32 s39, s37, s39")
    a("v_lshrrev_b32 v2, 4, v0", "v_and_b32 v3, 15, v0", f"v_mul_u32_u24 v2, {8*14336}, v2", "v_lshl_add_u32 v2, v3, 4, v2")
    a(f"s_mul_i32 s40, s38, {32*14336}", "s_lshl_b32 s41, s39, 8", "s_add_u32 s40, s40, s41")
    a("s_lshl_b32 s41, s39, 5", "s_add_u32 s41, s41, s38", "s_lshl_b32 s41, s41, 10", "v_lshlrev_b32 v4, 4, v0")
    a("s_waitcnt lgkmcnt(0)")
    a(f"s_mov_b32 s6, {K*N*4}", "s_mov_b32 s7, 0x20000", f"s_mov_b32 s10, {K*N//2}", "s_mov_b32 s11, 0x20000")
    for j in range(8):
        a(f"buffer_load_dwordx4 v[{8+4*j}:{11+4*j}], v2, s[4:7], s40 offen", "s_add_u32 s40, s40, 14336")
    a("s_waitcnt vmcnt(0)")
    for jp in range(4):
        for h in range(2):
            d = 8 + 8*jp + 2*h
            a(f"v_lshl_add_u64 v[{d}:{d+1}], v[{d+4}:{d+5}], 4, v[{d}:{d+1}]")
    for c in range(4):
        a(f"v_lshl_or_b32 v{40+c}, v{16+c}, 8, v{8+c}", f"v_lshl_or_b32 v{40+c}, v{24+c}, 16, v{40+c}", f"v_lshl_or_b32 v{40+c}, v{32+c}, 24, v{40+c}")
    a("buffer_store_dwordx4 v[40:43], v4, s[8:11], s41 offen")
    a("PK_END:")
    return dict(label="pack_kernel", body=a.text(), grid=448, block=256, lds=0, vgpr=48, accum=48)

def gen(diag=0, store_flags="nt", exp="", arr=0, alead=8, lat=5, aearly=1):
    a = E()
    sX, sQ, sO = 20, 24, 28
    def srd(r): return f"s[{r}:{r+3}]"
    nwg = 224
    DOFF = 4 << 20
    def stamp(idx):
        if diag:
            a(f"s_memrealtime s[{60+2*idx}:{61+2*idx}]")
            if idx in (1, 2): a(f"s_memtime s[{70+2*idx}:{71+2*idx}]")
    ACC = 128; Q = 32; W = [64, 80]; FA = 0
    vAo, vQ, vA, vO, vL, vSc = 8, 12, 14, 16, 17, 18
    stamp(0)
    a("s_load_dwordx2 s[4:5], s[0:1], 0", "s_load_dwordx4 s[8:11], s[0:1], 24", "s_load_dwordx2 s[16:17], s[0:1], 48")
    a("s_getpc_b64 s[48:49]", "L_PC0:", "v_lshlrev_b32 v2, 7, v0", "v_min_u32 v2, L_END-L_PC0, v2", "global_load_dword v7, v2, s[48:49]")
    a(f"s_cmp_ge_u32 s2, {nwg}", "s_cbranch_scc1 L_END")
    a("v_lshrrev_b32 v1, 6, v0", "v_and_b32 v3, 63, v0", "s_and_b32 s40, s2, 7", "s_lshr_b32 s41, s2, 3")
    a("v_readfirstlane_b32 s36, v1")
    if arr == 0:
        a("s_lshr_b32 s42, s40, 1", "s_and_b32 s43, s40, 1", "s_and_b32 s37, s41, 3", "s_lshl2_add_u32 s37, s42, s37", "s_lshr_b32 s38, s41, 2", "s_mul_i32 s43, s43, 7", "s_add_u32 s38, s38, s43")
    else:
        a("s_and_b32 s42, s40, 3", "s_mul_i32 s42, s42, 28", "s_add_u32 s42, s42, s41", "s_lshr_b32 s38, s42, 3", "s_and_b32 s37, s42, 7", "s_lshr_b32 s43, s40, 2", "s_lshl3_add_u32 s37, s43, s37")
    a(f"s_mov_b32 s{sQ+2}, {K*N//2}", f"s_mov_b32 s{sQ+3}, 0x20000", f"s_mov_b32 s{sX+2}, {M*K*2}", f"s_mov_b32 s{sX+3}, 0x20000")
    a("s_lshl2_add_u32 s39, s38, s36", "s_lshl_b32 s45, s39, 15", f"v_lshl_add_u32 v{vQ}, v3, 4, s45")
    a("s_lshl2_add_u32 s44, s37, s36", "s_lshl_b32 s45, s44, 16", "v_lshrrev_b32 v6, 3, v3",
      "v_lshl_add_u32 v2, v6, 11, s45", "v_and_b32 v4, 7, v3", "v_lshrrev_b32 v6, 4, v3", "v_xor_b32 v4, v4, v6",
      f"v_lshl_add_u32 v{vAo}, v4, 4, v2", f"v_xor_b32 v4, 64, v{vAo}")
    a(*[f"v_add_u32 v{vAo+j}, {j*16384 - j*1024}, v{4 if j&1 else vAo}" for j in range(1, 4)])
    a("s_lshl_b32 m0, s36, 12", "s_mov_b32 s50, 0", "s_mov_b32 s51, 0")
    a("s_waitcnt lgkmcnt(0)")
    a(f"s_mov_b64 s[{sQ}:{sQ+1}], s[16:17]", f"s_mov_b64 s[{sX}:{sX+1}], s[4:5]")
    def qload(u, ks): return vm(f"buffer_load_dwordx4 v[{Q+8*u+4*ks}:{Q+8*u+4*ks+3}], v{vQ}, {srd(sQ)}, s50 offen offset:{u*2048+ks*1024}", f"Q{u}{ks}")
    def adma(j, u): return vm(f"buffer_load_dwordx4 v{vAo+j}, {srd(sX)}, s51 offen offset:{j*1024} lds", f"A{u}{j}")
    P = [qload(0, 0), qload(0, 1)] + [adma(j, 0) for j in range(4)]
    P += [op(f"s_add_u32 m0, m0, {A_ST}"), op("s_add_u32 s51, s51, 128"), qload(1, 0), qload(1, 1)] + [adma(j, 1) for j in range(4)]
    LT = 96
    lb = [f"v_mov_b32 v2, {NF4[0] | NF4[8] << 16:#x}"]
    for j in range(1, 8): lb += ["s_lshl_b64 exec, exec, 8", f"v_mov_b32 v2, {NF4[j] | NF4[8+j] << 16:#x}"]
    lb += ["s_mov_b64 exec, -1",
           "s_and_b32 s45, s36, 1", "s_mul_i32 s45, s45, 0x0202", "s_lshr_b32 s46, s36, 1", "s_mul_i32 s46, s46, 0x02020000",
           "s_add_u32 s45, s45, s46", "s_add_u32 s45, s45, 0x05040100", "v_mov_b32 v4, s45",
           f"s_mov_b32 s44, {LUT_BASE}", "v_lshrrev_b32 v5, 3, v0", "v_lshl_add_u32 v5, v5, 8, s44", "v_and_b32 v31, 7, v0", "v_lshl_add_u32 v31, v31, 4, v5",
           "v_mov_b64 v[24:25], 0", "v_mov_b64 v[26:27], 0"]
    P += [op(x) for x in lb]
    def lutv(j):
        q = LT + 4 * j
        return [op(f"s_mov_b32 s45, {NF4[2*j] | NF4[2*j+1] << 16:#x}"), op(f"v_perm_b32 v{q}, s45, v2, v4"), op(f"v_mov_b32 v{q+1}, v{q}"), op(f"v_mov_b64 v[{q+2}:{q+3}], v[{q}:{q+1}]")]
    pre = ["v_and_b32 v5, 31, v0", f"v_lshl_add_u32 v{vL}, v5, 2, s44", "v_and_b32 v0, 63, v0", "v_and_b32 v3, 15, v0",
           "s_lshl_b32 s46, s39, 7", "v_lshl_add_u32 v28, v3, 3, s46",
           f"s_mov_b64 s[{sO}:{sO+1}], s[10:11]", f"s_mov_b32 s{sO+2}, {M*N*2}", f"s_mov_b32 s{sO+3}, 0x20000",
           "s_lshl_b32 s47, s37, 7", "v_lshl_add_u32 v29, v6, 2, s47", "v_mul_u32_u24 v29, 7168, v29", f"v_add_u32 v{vO}, v29, v28",
           "v_lshlrev_b32 v29, 7, v3", "v_bfe_u32 v5, v0, 1, 3", "v_xor_b32 v5, v5, v6", f"v_lshl_add_u32 v{vA}, v5, 4, v29", f"v_xor_b32 v{vA+1}, 64, v{vA}",
           "s_mov_b32 s52, 0x0c020400", "s_mov_b32 s53, 0x0c020500", "s_mov_b32 s54, 0x0c020600", "s_mov_b32 s55, 0x0c020700"]
    pre = [op(x) for x in pre]
    def zero(t): return op(f"v_mfma_f32_32x32x16_bf16 v[{ACC+16*t}:{ACC+16*t+15}], v[24:27], v[24:27], 0")
    P += lutv(0)
    for j in range(8):
        P += [zero(j), lds(f"ds_write_b128 v31, v[{LT+4*j}:{LT+4*j+3}] offset:{j*8192}")]
        if j < 7: P += lutv(j + 1)
        P += pre[3*j:3*j+3] if j < 7 else pre[21:]
    P += [wait(l="all"), op("s_barrier")]
    def d_perm(u, ks, c, jp): return op(f"v_perm_b32 v{W[ks]+4*c+jp}, v{Q+8*u+4*ks+c}, v{vL}, s{52+jp}", [f"Q{u}{ks}"])
    def d_lut(ks, c, jp): return lds(f"ds_read_b32 v{W[ks]+4*c+jp}, v{W[ks]+4*c+jp}", f"L{ks}{c}{jp}")
    def rdA(u, ks, m): return lds(f"ds_read_b128 a[{FA+4*m}:{FA+4*m+3}], v{vA+ks} offset:{u*A_ST + m*2048}", f"fa{m}")
    P += [wait(v="Q00")]
    for c in range(4): P += [d_perm(0, 0, c, jp) for jp in range(4)] + [d_lut(0, c, jp) for jp in range(4)]
    P += [op("s_add_u32 s50, s50, 4096"), qload(0, 0)]
    P += [wait(v="A03"), op("s_barrier")]
    nl = alead // 4
    P += [rdA(0, 0, m) for m in range(nl)]
    def mfmas(ks):
        return [op(f"v_mfma_f32_16x16x32_bf16 v[{ACC+(m*4+c)*4}:{ACC+(m*4+c)*4+3}], a[{FA+4*m}:{FA+4*m+3}], v[{W[ks]+4*c}:{W[ks]+4*c+3}], v[{ACC+(m*4+c)*4}:{ACC+(m*4+c)*4+3}]",
                   [f"fa{m}"] + [f"L{ks}{c}{jp}" for jp in range(4)]) for m in range(8) for c in range(4)]
    g = Gaps(128)
    for sub in range(4):
        u, ks = sub >> 1, sub & 1; b = 32 * sub
        nu, nks = ((sub + 1) >> 1) & 1, (sub + 1) & 1
        for m in range(8):
            mm = m + nl
            x = rdA(u, ks, mm) if mm < 8 else rdA(nu, nks, mm - 8)
            g.put("ds", x, b + 4*m, b + 4*m)
            nxt = (m + 1) % 8
            if m < 7: g.put("sc", wait(l=f"fa{nxt}"), b + 4*m + 3, b + 4*m + 3)
        if "nodq" not in exp:
            g.put("sc", wait(v=f"Q{nu}{nks}"), b, b)
            p = b
            for c in range(4):
                for jp in range(4):
                    q = g.put("va", d_perm(nu, nks, c, jp), p)
                    p = g.put("ds", d_lut(nks, c, jp), q + 1, b + 31 - lat)
        g.put("sc", wait(l="fa0" if "nodq" in exp or alead <= 8 else f"L{nks}33"), b + 31, b + 31)
        if sub == 3: g.put("sc", op("s_add_u32 s50, s50, 4096"), b + 20)
        if "nob" not in exp: g.put("vm", qload(nu, nks), b + 26)
        if ks == 0:
            g.put("sc", op(f"s_add_u32 m0, m0, {A_ST}"), b + 1); g.put("sc", op("s_and_b32 m0, m0, 0xffff"), b + 2)
            g.put("sc", op("s_add_u32 s51, s51, 128"), b + 4)
            if u == 0:
                q = g.put("sc", op("s_cmp_lt_u32 s51, 2048"), b + 5); g.put("sc", op(f"s_cselect_b32 s{sX+2}, {M*K*2}, 0"), q + 1, q + 1)
        if "noa" not in exp:
            if aearly:
                if ks == 0:
                    for j in range(4): g.put("vm", adma(j, u), b + 8 + 4*j, b + 8 + 4*j)
            else:
                for j in range(2): g.put("vm", adma(2*ks + j, u), b + 23 + 6*j)
        if ks == 1:
            bp = b + 32 - alead
            if "noa" not in exp: g.put("sc", wait(v=f"A{1-u}3"), bp - 2, bp - 1)
            g.put("sc", op("s_barrier"), bp, bp)
            if u == 1: g.put("va", op(f"v_xor_b32 v{vA}, {2*A_ST}, v{vA}"), bp - 3, bp - 1)
        if sub == 3:
            g.put("va", op(f"v_xor_b32 v{vA+1}, {2*A_ST}, v{vA+1}"), b + 29, b + 31)
            g.put("sc", op(f"s_cmp_lt_u32 s51, {17*128}"), b + 29, b + 30)
        if diag == 2 and ks == 0:
            g.put("sc", op("s_memtime s[58:59]"), b + 8); g.put("sc", op("s_memrealtime s[56:57]"), b + 9)
            g.put("va", op("v_mov_b32_dpp v1, v1 row_shr:1 row_mask:0x5 bank_mask:0xf"), b + 24)
            g.put("va", op("v_writelane_b32 v1, s58, 0"), b + 28); g.put("va", op("v_writelane_b32 v1, s56, 32"), b + 30)
    mf = mfmas(0) + mfmas(1) + mfmas(0) + mfmas(1)
    body = place(mf, g.slots())
    P += [vm(f"global_load_dwordx2 v[{vSc}:{vSc+1}], v28, s[8:9]", "SC")] if False else []
    P += [wait(l="fa0")]
    chk = exp == ""
    tP = resolve(P, check=chk)
    t1 = resolve(body, prev=P, check=chk); t2 = resolve(body, prev=body + body, check=chk)
    import re
    tb = []
    for x, y in zip(t1, t2):
        if x != y:
            nx = dict(re.findall(r"(\w+cnt)\((\d+)\)", x)); ny = dict(re.findall(r"(\w+cnt)\((\d+)\)", y))
            x = "s_waitcnt " + " ".join(f"{k}({min(int(nx[k]), int(ny[k]))})" for k in nx)
        tb.append(x)
    a(*tP); stamp(1)
    a(".p2align 6", "L_LOOP:"); a(*tb); a("s_cbranch_scc1 L_LOOP")
    stamp(2)
    a(f"global_load_dwordx2 v[{vSc}:{vSc+1}], v28, s[8:9]")
    a("s_waitcnt vmcnt(0) lgkmcnt(0)")
    SC = 20
    for h in range(2): a(f"v_lshlrev_b32 v{SC+2*h}, 16, v{vSc+h}", f"v_and_b32 v{SC+2*h+1}, 0xffff0000, v{vSc+h}")
    a("s_nop 3")
    n = 0
    for m in range(8):
        for r in range(0, 4, 2):
            for c in range(4):
                d = ACC + (m*4 + c) * 4 + r; s_ = SC + (c & ~1)
                sel = "op_sel:[0,1] op_sel_hi:[1,1]" if c & 1 else "op_sel:[0,0] op_sel_hi:[1,0]"
                a(f"v_pk_mul_f32 v[{d}:{d+1}], v[{d}:{d+1}], v[{s_}:{s_+1}] {sel}")
            for rr in range(2):
                q = 32 + 2 * (n % 16); n += 1
                for h in range(2): a(f"v_cvt_pk_bf16_f32 v{q+h}, v{ACC+(m*4+2*h)*4+r+rr}, v{ACC+(m*4+2*h+1)*4+r+rr}")
                a(f"s_mov_b32 s56, {(16*m + r + rr) * 7168}")
                a(f"buffer_store_dwordx2 v[{q}:{q+1}], v{vO}, {srd(sO)}, s56 offen {store_flags}")
    if diag:
        stamp(3); a("s_waitcnt vmcnt(0)"); stamp(4)
        a("s_waitcnt lgkmcnt(0)")
        for i in range(5): a(f"v_writelane_b32 v1, s{60+2*i}, {16+i}")
        a("v_writelane_b32 v1, s72, 21", "v_writelane_b32 v1, s74, 22")
        a("s_getreg_b32 s58, hwreg(HW_REG_XCC_ID)", "s_nop 3", "v_writelane_b32 v1, s58, 23")
        a("s_lshl_b32 s58, s2, 2", "s_add_u32 s58, s58, s36", "s_lshl_b32 s58, s58, 8", f"s_add_u32 s58, s58, {DOFF}")
        a("v_lshl_add_u32 v61, v0, 2, s58", "global_store_dword v61, v1, s[16:17]", "s_waitcnt vmcnt(0)")
    a("L_END:")
    k2 = dict(label=NAME+"_kernel", body=a.text(), grid=nwg, block=256, lds=LDS, vgpr=256 + 32, accum=256)
    return [pack_kernel(), k2]

if __name__ == "__main__":
    kw = eval("dict(" + (sys.argv[2] if len(sys.argv) > 2 else "") + ")")
    open(sys.argv[1], "w").write(file_text(gen(**kw), single=False))
```

```python
from common import *
from tl import *
from sched import scc_check
from v4 import E, NF4
import v5
import sys
M, K, N = 2048, 1024, 3584
A_BASE = 0x10000; NS = 24; LDS = A_BASE + NS * 4096

def block_order(lag, s0):
    bl = []
    for g in range(4):
        for s in range(32):
            bl.append((s + lag[g] * max(0, s - s0) / (31 - s0), g, s))
    bl.sort()
    return [(g, s) for _, g, s in bl]

def main_timeline(P):
    ACC = 128; Q = P.Q; NQ = P.NQ; T = P.T; NT = P.NT; RW = P.RW; FA = 16 * RW; NR = (256 - FA) // 4
    vAo, vQ, vA, vO, vL, vSc, SC, EP = P.vAo, P.vQ, P.vA, P.vO, P.vL, P.vSc, P.SC, P.EP
    sX, sQ, sO = P.sX, P.sQ, P.sO
    srd = lambda r: f"s[{r}:{r+3}]"
    order = block_order(P.lag, P.ramp0)
    mf = []; fpos = {}; frag = {}; first = {}; last = {}; glast = {}
    for g, s in order:
        for m in (2*g, 2*g + 1):
            fi = len(fpos); fpos[(m, s)] = len(mf); frag[(m, s)] = fi
            r = FA + 4 * (fi % NR)
            for c in range(4):
                d = ACC + (m*4 + c) * 4; w = 16 * (s % RW) + 4*c
                first.setdefault(s, len(mf)); last[s] = len(mf); glast[m] = len(mf)
                mf.append(Op(f"v_mfma_f32_16x16x32_bf16 v[{d}:{d+3}], a[{r}:{r+3}], a[{w}:{w+3}], " + (f"v[{d}:{d+3}]" if s else "0"), "mf", None,
                             [f"fa{m}_{s}"] + [f"L{s}_{c}_{jp}" for jp in range(4)]))
    t = TL(mf, pre=320)
    chunks = sorted({(m >> 1, s >> 1) for (m, s) in fpos}, key=lambda k: fpos[(2*k[0], 2*k[1])])
    slot = {k: i % NS for i, k in enumerate(chunks)}
    rpos = {}
    for (m, s), p in sorted(fpos.items(), key=lambda kv: kv[1]):
        sl = slot[(m >> 1, s >> 1)]; r = FA + 4 * (frag[(m, s)] % NR)
        x = Op(f"ds_read_b128 a[{r}:{r+3}], v{vA + (s & 1) + 2*(sl >> 4)} offset:{(sl & 15)*4096 + (m & 1)*2048}", "ds", f"fa{m}_{s}")
        rpos[(m, s)] = t.put(x, p - P.alead, p - P.alead)
        assert P.alead <= 4 * (NR - 1)
    st0 = min(glast[1] + 8, len(mf))
    bars = [b for b in range(-P.alead, len(mf), P.pb) if b <= st0 - P.pb // 2] + [st0 - ((st0 + P.alead) % 4)]
    bop = {b: Op("s_barrier", "sc", None, []) for b in bars}
    des = []
    for k in chunks:
        fr = rpos[(2*k[0], 2*k[1])]
        b = max(x for x in bars if x <= fr); des.append([k, b, b - P.tol])
    for i in range(len(des) - 2, -1, -1): des[i][2] = min(des[i][2], des[i+1][2] - P.dsep)
    for b in bars: t.put(bop[b], b, b)
    dma = []
    for i, (k, b, p) in enumerate(des):
        g, s = k
        while (p + P.alead) % 4 != 0 or p in bop or (p - 1) in bop: p -= 1
        x = Op(f"buffer_load_dwordx4 v{vAo+g}, {srd(sX)}, 0 offen offset:{s*128} lds", "vm", f"A{g}_{s}")
        p = t.put(x, p, back=True)
        t.put(Op(f"s_add_u32 m0, s33, {A_BASE + slot[k]*4096 - s*128}", "sc"), p - 1, max([q for q in dma] + [-999]) + 1, back=True)
        dma.append(p)
        bop[b].need += (x.tag,)
        if i >= NS:
            og, os_ = chunks[i - NS]; lr = rpos[(2*og + 1, 2*os_ + 1)]
            cand = [q for q in bars if lr + P.lat <= q <= p]
            assert cand, ("slot reuse", k, lr, p)
            bop[cand[-1]].need += (f"fa{2*og+1}_{2*os_+1}",)
    p = 10**9; qneed = {}; ti = 0
    for s in range(31, -1, -1):
        p = min(p, first[s] - P.lat - 1)
        lo = last[s - RW] if s >= RW else t.lo
        q = 10**9
        for c in range(3, -1, -1):
            for jp in range(3, -1, -1):
                tr = T + ti % NT; ti += 1
                p = t.put(Op(f"ds_read_b32 a{16*(s % RW) + 4*c + jp}, v{tr}", "ds", f"L{s}_{c}_{jp}"), p, lo, back=True)
                q = t.put(Op(f"v_perm_b32 v{tr}, v{Q + 4*(s % NQ) + c}, v{vL}, s{52+jp}", "va", f"P{s}_{c}_{jp}", [f"Q{s}"]), min(p - 1, q), p - NT // 2, back=True)
                p -= 1
        qneed[s] = q
    qpos = {}
    for s in range(32):
        p = qneed[s] - P.qlead
        if s >= NQ: p = max(p, t.pos[f"P{s-NQ}_3_3"] + 1)
        if s: p = max(p, qpos[s-1] + 2)
        x = Op(f"buffer_load_dwordx4 v[{Q+4*(s%NQ)}:{Q+4*(s%NQ)+3}], v{vQ}, {srd(sQ)}, 0 offen offset:{(s & 3)*1024}{P.qflags}", "vm", f"Q{s}")
        qpos[s] = t.put(x, p, qneed[s] - 1)
        if s & 3 == 3 and s < 31: qpos[s] = t.put(Op(f"v_add_u32 v{vQ}, 4096, v{vQ}", "va"), qpos[s]) - 1
    p = 40
    for h in range(2):
        p = t.put(Op(f"v_lshlrev_b32 v{SC+2*h}, 16, v{vSc+h}", "va", None, ["SC"]), p)
        p = t.put(Op(f"v_and_b32 v{SC+2*h+1}, 0xffff0000, v{vSc+h}", "va", None, ["SC"]), p)
    post = []; p = 0; ne = 0; inpost = False; prev = 0
    for m in range(8):
        for r in range(4):
            e = EP + 2 * (ne % 4); ne += 1
            row = 16*m + r
            adv = [f"s_add_u32 s{sO}, s{sO}, {(row - prev)*7168}", f"s_addc_u32 s{sO+1}, s{sO+1}, 0"] if row else []
            prev = row
            a_ = lambda c: ACC + (m*4 + c) * 4 + r
            cv = [f"v_cvt_pk_bf16_f32 v{e+h}, v{a_(2*h)}, v{a_(2*h+1)}" for h in range(2)]
            st = f"buffer_store_dwordx2 v[{e}:{e+1}], v{vO}, {srd(sO)}, 0 offen {P.store_flags}"
            p = max(p, glast[m] + 8)
            if r % 2 == 0 and p + 14 >= len(mf): inpost = True
            if not inpost:
                ps = p
                if adv:
                    while True:
                        while not t.ok(Op("", "sc"), ps): ps += 1
                        if t.ok(Op("", "sc"), ps + 1): break
                        ps += 1
                    t.put(Op(adv[0], "sc"), ps); ps = t.put(Op(adv[1], "sc"), ps + 1)
                for c in range(4): p = t.put(Op(f"v_mul_f32 v{a_(c)}, v{a_(c)}, v{SC+c}", "va"), p)
                for x in cv: p = t.put(Op(x, "va"), p)
                p = t.put(Op(st, "st"), max(p + 1, ps + 1, st0 + 1)) + 1
                p = max(p, p + P.epace)
            else:
                if r % 2 == 0:
                    for c in range(4):
                        sel = "op_sel:[0,1] op_sel_hi:[1,1]" if c & 1 else "op_sel:[0,0] op_sel_hi:[1,0]"
                        post.append(f"v_pk_mul_f32 v[{a_(c)}:{a_(c)+1}], v[{a_(c)}:{a_(c)+1}], v[{SC+(c&~1)}:{SC+(c&~1)+1}] {sel}")
                post += cv + adv + [st]
    return t, dict(post=post, qpos=qpos, qneed=qneed, first=first, bars=bars, st0=st0, glast=glast)

class NS_: pass
def params(**kw):
    P = NS_()
    d = dict(lag=(0, 2, 5, 11), ramp0=6, RW=14, alead=8, lat=5, pb=64, tol=72, dsep=12, qlead=64, NQ=4, NT=8, qflags="", store_flags="nt", epace=0, vlat=10**6,
             Q=32, T=56, EP=64, vAo=8, vQ=12, vA=14, vO=18, vL=19, vSc=20, SC=24, sX=20, sQ=24, sO=28)
    d.update(kw); P.__dict__.update(d); return P

def gen(diag=0, arr=0, verbose=0, **kw):
    P = params(**kw)
    a = E(); nwg = 224; DOFF = 4 << 20
    vAo, vQ, vA, vO, vL, vSc = P.vAo, P.vQ, P.vA, P.vO, P.vL, P.vSc
    sX, sQ, sO = P.sX, P.sQ, P.sO
    def stamp(idx):
        r = []
        if diag:
            r.append(f"s_memrealtime s[{60+2*idx}:{61+2*idx}]")
            if idx in (1, 2): r.append(f"s_memtime s[{70+2*idx}:{71+2*idx}]")
        return r
    t, info = main_timeline(P)
    a(*stamp(0))
    a("s_load_dwordx2 s[4:5], s[0:1], 0", "s_load_dwordx4 s[8:11], s[0:1], 24", "s_load_dwordx2 s[16:17], s[0:1], 48")
    a("s_getpc_b64 s[48:49]", "L_PC0:", "v_lshlrev_b32 v2, 7, v0", "v_min_u32 v2, L_END-L_PC0, v2", "global_load_dword v7, v2, s[48:49]")
    a(f"s_cmp_ge_u32 s2, {nwg}", "s_cbranch_scc1 L_END")
    a("v_lshrrev_b32 v1, 6, v0", "v_and_b32 v3, 63, v0", "s_and_b32 s40, s2, 7", "s_lshr_b32 s41, s2, 3")
    a("v_readfirstlane_b32 s36, v1")
    a("s_lshr_b32 s42, s40, 1", "s_and_b32 s43, s40, 1", "s_and_b32 s37, s41, 3", "s_lshl2_add_u32 s37, s42, s37", "s_lshr_b32 s38, s41, 2", "s_mul_i32 s43, s43, 7", "s_add_u32 s38, s38, s43")
    a(f"s_mov_b32 s{sQ+2}, 32768", f"s_mov_b32 s{sQ+3}, 0x20000", f"s_mov_b32 s{sX+2}, {M*K*2}", f"s_mov_b32 s{sX+3}, 0x20000")
    a("s_lshl2_add_u32 s39, s38, s36", "s_lshl_b32 s45, s39, 15", f"v_lshlrev_b32 v{vQ}, 4, v3")
    a("s_lshl_b32 s46, s37, 18", "v_lshrrev_b32 v6, 3, v0", "v_lshl_add_u32 v2, v6, 11, s46", "v_lshrrev_b32 v6, 4, v0", "v_xor_b32 v4, v6, v0", "v_and_b32 v4, 7, v4",
      f"v_lshl_add_u32 v{vAo}, v4, 4, v2")
    a(*[f"v_add_u32 v{vAo+g}, {g*65536}, v{vAo}" for g in range(1, 4)])
    a("s_lshl_b32 s33, s36, 10")
    a("s_waitcnt lgkmcnt(0)")
    a(f"s_add_u32 s{sQ}, s16, s45", f"s_addc_u32 s{sQ+1}, s17, 0", f"s_mov_b64 s[{sX}:{sX+1}], s[4:5]")
    firstperm = min(info["qneed"].values())
    head = []
    for g in range(t.lo, firstperm):
        head += t.sc.get(g, []) + t.mem.get(g, []) + t.va.get(g, [])
        t.sc[g] = []; t.mem[g] = []; t.va[g] = []
    h2 = []
    for x in head:
        if x.text.endswith("lds") and h2 and "m0" in h2[-1].text: h2.append(Op("s_nop 0", "x"))
        h2.append(x)
    head = h2
    LT = 72
    o = lambda s_: Op(s_, "x")
    lb = [f"v_mov_b32 v2, {NF4[0] | NF4[8] << 16:#x}"]
    for j in range(1, 8): lb += ["s_lshl_b64 exec, exec, 8", f"v_mov_b32 v2, {NF4[j] | NF4[8+j] << 16:#x}"]
    lb += ["s_mov_b64 exec, -1",
           "s_and_b32 s45, s36, 1", "s_mul_i32 s45, s45, 0x0202", "s_lshr_b32 s46, s36, 1", "s_mul_i32 s46, s46, 0x02020000",
           "s_add_u32 s45, s45, s46", "s_add_u32 s45, s45, 0x05040100", "v_mov_b32 v4, s45",
           "v_lshrrev_b32 v5, 3, v0", "v_lshlrev_b32 v5, 8, v5", "v_and_b32 v31, 7, v0", "v_lshl_add_u32 v31, v31, 4, v5"]
    head += [o(x) for x in lb]
    def lutv(j):
        q = LT + 4 * j
        return [o(f"s_mov_b32 s45, {NF4[2*j] | NF4[2*j+1] << 16:#x}"), o(f"v_perm_b32 v{q}, s45, v2, v4"), o(f"v_mov_b32 v{q+1}, v{q}"), o(f"v_mov_b64 v[{q+2}:{q+3}], v[{q}:{q+1}]")]
    pre = ["v_and_b32 v5, 31, v0", f"v_lshlrev_b32 v{vL}, 2, v5", "v_and_b32 v0, 63, v0", "v_and_b32 v3, 15, v0", "v_and_b32 v6, 3, v6",
           "s_lshl_b32 s46, s39, 7", "v_lshl_add_u32 v28, v3, 3, s46",
           f"s_mul_i32 s47, s37, {128*7168}", "s_add_u32 s47, s47, s46", f"s_add_u32 s{sO}, s10, s47\ns_addc_u32 s{sO+1}, s11, 0",
           f"s_mov_b32 s{sO+2}, {12*7168+128}", f"s_mov_b32 s{sO+3}, 0x20000",
           f"v_mul_u32_u24 v29, {4*7168}, v6", f"v_lshl_add_u32 v{vO}, v3, 3, v29",
           "v_lshlrev_b32 v29, 7, v3", "v_bfe_u32 v5, v0, 1, 3", "v_xor_b32 v5, v5, v6", "v_lshl_add_u32 v29, v5, 4, v29",
           f"v_add_u32 v{vA}, {A_BASE}, v29", f"v_xor_b32 v{vA+1}, 64, v{vA}", f"v_add_u32 v{vA+2}, 0x10000, v{vA}", f"v_add_u32 v{vA+3}, 0x10000, v{vA+1}",
           "s_mov_b32 s52, 0x0c0c0400", "s_mov_b32 s53, 0x0c0c0500", "s_mov_b32 s54, 0x0c0c0600", "s_mov_b32 s55, 0x0c0c0700"]
    pre = [o(x) for x in pre]
    head += lutv(0)
    for j in range(8):
        head += [Op(f"ds_write_b128 v31, v[{LT+4*j}:{LT+4*j+3}] offset:{j*8192}", "ds", f"LW{j}")]
        if j < 7: head += lutv(j + 1)
        head += pre[3*j:3*j+3] if j < 7 else pre[21:]
    head += [Op(f"global_load_dwordx2 v[{vSc}:{vSc+1}], v28, s[8:9]", "vm", "SC"), Op("s_barrier", "x", None, ["LW7"])]
    if diag:
        t.va.setdefault(-1, []).extend(o(x) for x in stamp(1))
        if diag == 2:
            for i in range(16):
                q = t.put(Op("s_memtime s[58:59]", "sc"), 64*i + 1)
                t.va.setdefault(q + 12, []).append(o(f"v_writelane_b32 v1, s58, {15-i}"))
    body = t.emit(lat=P.lat, vlat=P.vlat, head=head)
    b2 = []
    for x in body:
        if x.endswith("lds") and " m0," in b2[-1]: b2.append("s_nop 0")
        b2.append(x)
    scc_check(b2 + info["post"])
    if verbose: print(t.stats, "bars", info["bars"], "st0", info["st0"], "glast", info["glast"], "post", len(info["post"]), "qpos", info["qpos"], file=sys.stderr)
    a(*b2); a(*stamp(2)); a("s_nop 7"); a(*info["post"])
    if diag:
        a(*stamp(3)); a("s_waitcnt vmcnt(0)"); a(*stamp(4))
        a("s_waitcnt lgkmcnt(0)")
        for i in range(5): a(f"v_writelane_b32 v1, s{60+2*i}, {16+i}")
        a("v_writelane_b32 v1, s72, 21", "v_writelane_b32 v1, s74, 22")
        a("s_getreg_b32 s58, hwreg(HW_REG_XCC_ID)", "s_nop 3", "v_writelane_b32 v1, s58, 23")
        a("s_lshl_b32 s58, s2, 2", "s_add_u32 s58, s58, s36", "s_lshl_b32 s58, s58, 8", f"s_add_u32 s58, s58, {DOFF}")
        a("v_lshl_add_u32 v61, v0, 2, s58", "global_store_dword v61, v1, s[16:17]", "s_waitcnt vmcnt(0)")
    a("L_END:")
    k2 = dict(label=NAME+"_kernel", body=a.text(), grid=nwg, block=256, lds=LDS, vgpr=512, accum=256)
    return [v5.pack_kernel(), k2]

if __name__ == "__main__":
    kw = eval("dict(" + (sys.argv[2] if len(sys.argv) > 2 else "") + ")")
    open(sys.argv[1], "w").write(file_text(gen(**kw), single=False))
```

```python
from common import *
from tl import *
from sched import scc_check
from v4 import E, NF4
from v8 import block_order
import sys
M, K, N = 2048, 1024, 3584
A_BASE = 0x10000; NS = 24; LDS = A_BASE + NS * 4096
DOFF = 4 << 20
ACC = 128; T = 56; NT = 8; RAW = [64, 96]; QS = [32, 40, 48, 96, 104, 112]; TMP = 120; EP = 120
vAo, vQ, vA, vO, vL, vSc, vN, SC, vR = 8, 12, 14, 18, 19, 20, 22, 24, 30
sX, sQ, sO, sD, sR, sN = 20, 24, 28, 80, 84, 88
srd = lambda r: f"s[{r}:{r+3}]"

def or_ops(raw):
    return [f"v_lshl_add_u64 v[{raw+8*jp+2*h}:{raw+8*jp+2*h+1}], v[{raw+8*jp+2*h+4}:{raw+8*jp+2*h+5}], 4, v[{raw+8*jp+2*h}:{raw+8*jp+2*h+1}]" for jp in range(4) for h in range(2)]
def pack_half(raw, dst):
    o = or_ops(raw)[:4]
    for c in range(4): o.append(f"v_lshl_or_b32 v{raw+c}, v{raw+8+c}, 8, v{raw+c}")
    for d in range(2): o.append(f"v_lshl_or_b32 v{dst+d}, v{raw+2*d+1}, 16, v{raw+2*d}")
    return o
def pack_ops(raw, dst): return pack_half(raw, dst) + pack_half(raw + 16, dst + 4)

def packer(a, P):
    R, diag, sf = P.R, P.diag, P.sf
    a("v_lshlrev_b32 v16, 3, v0", "s_cmp_eq_u32 s2, 0", "s_cselect_b32 s34, 128, 0", "s_mov_b32 s35, 0x20000")
    a("s_waitcnt lgkmcnt(0)", "s_mov_b64 s[32:33], s[12:13]", "v_mov_b64 v[4:5], s[56:57]")
    a(f"buffer_store_dwordx2 v[4:5], v16, s[32:35], 0 offen {sf}")
    a("v_and_b32 v0, 63, v0", "v_lshrrev_b32 v2, 4, v0", "v_and_b32 v3, 15, v0", f"v_mul_u32_u24 v2, {8*14336}, v2", "v_lshl_add_u32 v8, v3, 4, v2", "s_movk_i32 s47, 0x3800")
    for j in range(1, 8): a(f"v_add_u32 v{8+j}, s47, v{7+j}")
    a("s_mul_i32 s40, s2, 4682", "s_lshr_b32 s40, s40, 16", "s_mul_i32 s41, s40, 14", "s_sub_u32 s41, s2, s41", f"s_add_u32 s40, s40, {R + P.S}")
    a(f"s_mov_b32 s22, {K*N*4}", "s_mov_b32 s23, 0x20000")
    def unit(so):
        a("s_lshl2_add_u32 s42, s41, s36", f"s_mul_i32 s43, s40, {32*14336}", "s_lshl_b32 s44, s42, 8", "s_add_u32 s43, s43, s44")
        a("s_lshl_b32 s44, s42, 5", "s_add_u32 s44, s44, s40", f"s_lshl_b32 s{so}, s44, 11", "s_cmp_lt_u32 s40, 32", f"s_cselect_b32 s{so}, s{so}, -1")
        a("s_add_u32 s41, s41, 4", "s_add_u32 s40, s40, 2", "s_cmp_ge_u32 s41, 14", "s_cselect_b32 s48, 14, 0", "s_addc_u32 s40, s40, 0", "s_sub_u32 s41, s41, s48")
    def loads(b):
        for j in range(8): a(f"buffer_load_dwordx4 v[{b+4*j}:{b+4*j+3}], v{8+j}, s[20:23], s43 offen")
    def stores(so):
        for g in range(2): a(f"buffer_store_dwordx4 v[{20+4*g}:{23+4*g}], v18, s[24:27], s{so} offen offset:{g*1024} {P.df}")
    unit(50)
    a("s_mov_b64 s[20:21], s[6:7]")
    loads(32)
    a("s_mov_b64 s[24:25], s[14:15]", f"s_mov_b32 s26, {0 if P.nost else K*N}", "s_mov_b32 s27, 0x20000", "s_movk_i32 s34, 128", "v_mov_b32 v16, 0", "v_lshlrev_b32 v18, 4, v0", f"s_movk_i32 s46, {P.budget}")
    unit(51)
    loads(64)
    a("s_load_dwordx2 s[52:53], s[12:13], 0")
    a("s_waitcnt vmcnt(8)")
    a(*pack_ops(32, 20))
    a("s_waitcnt lgkmcnt(0)", "v_mov_b64 v[22:23], s[52:53]", "s_nop 0")
    a("L_PKN:", "v_cmp_ne_u64 vcc, 0, v[22:23]", "s_sub_u32 s46, s46, 1", "s_cmp_gt_i32 s46, 0", "s_cbranch_vccnz L_PKGO", "s_cbranch_scc0 L_END")
    a(f"buffer_load_dwordx2 v[22:23], v16, s[32:35], 0 offen {P.lf}", "s_waitcnt vmcnt(0)", "s_branch L_PKN")
    a("L_PKGO:", "v_mov_b64 v[26:27], v[22:23]")
    if diag: a("s_memrealtime s[64:65]")
    def stampr():
        if diag: a("s_memrealtime s[62:63]", "v_mov_b32_dpp v1, v1 row_shr:1 row_mask:0x1 bank_mask:0xf", "s_waitcnt lgkmcnt(0)", "v_writelane_b32 v1, s62, 0")
    a("L_PKLOOP:")
    for b, so, so2 in ((32, 50, 51), (64, 51, 50)):
        stores(so); stampr()
        a(f"s_cmp_eq_u32 s{so2}, -1", "s_cbranch_scc1 L_PKEND")
        unit(so); loads(b)
        a("s_waitcnt vmcnt(10)")
        a(*pack_ops(96 - b, 20))
    a("s_branch L_PKLOOP", "L_PKEND:")
    if diag:
        a("v_writelane_b32 v1, s60, 48", "v_writelane_b32 v1, s62, 49", "v_writelane_b32 v1, s64, 50", "v_writelane_b32 v1, 0, 20")
        a("s_lshl_b32 s58, s2, 2", "s_add_u32 s58, s58, s36", "s_lshl_b32 s58, s58, 8", f"s_add_u32 s58, s58, {DOFF}")
        a("s_waitcnt vmcnt(0)", "v_lshl_add_u32 v61, v0, 2, s58", "global_store_dword v61, v1, s[14:15]")
    a("s_endpgm")

def timeline(P):
    R = P.R; RW = P.RW; FA = 16 * RW; NR = (256 - FA) // 4
    order = block_order(P.lag, P.ramp0)
    mf = []; fpos = {}; frag = {}; first = {}; last = {}; glast = {}
    bub = {0: -P.alead - 4}
    for g, s in order:
        if g == 4 - P.boff // 8 and s + 1 in P.burst:
            bub[s + 1] = len(mf); mf += [None] * 4
        for m in (2*g, 2*g + 1):
            fi = len(fpos); fpos[(m, s)] = len(mf); frag[(m, s)] = fi
            r = FA + 4 * (fi % NR)
            for c in range(4):
                d = ACC + (m*4 + c) * 4; w = 16 * (s % RW) + 4*c
                first.setdefault(s, len(mf)); last[s] = len(mf); glast[m] = len(mf)
                mf.append(Op(f"v_mfma_f32_16x16x32_bf16 v[{d}:{d+3}], a[{r}:{r+3}], a[{w}:{w+3}], " + (f"v[{d}:{d+3}]" if s else "0"), "mf", None,
                             [f"fa{m}_{s}"] + [f"L{s}_{c}_{jp}" for jp in range(4)]))
    t = TL(mf, pre=320)
    chunks = sorted({(m >> 1, s >> 1) for (m, s) in fpos}, key=lambda k: fpos[(2*k[0], 2*k[1])])
    slot = {k: i % NS for i, k in enumerate(chunks)}
    rpos = {}
    for (m, s), p in sorted(fpos.items(), key=lambda kv: kv[1]):
        sl = slot[(m >> 1, s >> 1)]; r = FA + 4 * (frag[(m, s)] % NR)
        x = Op(f"ds_read_b128 a[{r}:{r+3}], v{vA + (s & 1) + 2*(sl >> 4)} offset:{(sl & 15)*4096 + (m & 1)*2048}", "ds", f"fa{m}_{s}")
        rpos[(m, s)] = t.put(x, p - P.alead, p - P.alead)
    assert P.alead <= 4 * (NR - 1)
    st0 = min(glast[1] + 8, len(mf))
    bars = [b for b in range(-P.alead, len(mf), P.pb) if b <= st0 - P.pb // 2] + [st0 - ((st0 + P.alead) % 4)]
    bop = {b: Op("s_barrier", "sc", None, []) for b in bars}
    des = []
    for k in chunks:
        fr = rpos[(2*k[0], 2*k[1])]
        b = max(x for x in bars if x <= fr); des.append([k, b, b - P.tol])
    for i in range(len(des) - 2, -1, -1): des[i][2] = min(des[i][2], des[i+1][2] - P.dsep)
    for i, d in enumerate(des):
        if d[0][1] in P.apos: d[2] = P.apos[d[0][1]] + 4 * d[0][0]
    for b in bars: t.put(bop[b], b, b)
    dma = []
    for i, (k, b, p) in enumerate(des):
        g, s = k
        while (p + P.alead) % 4 != 0 or p in bop or (p - 1) in bop: p -= 1
        if dma: p = max(p, dma[-1] + 4)
        x = Op(f"buffer_load_dwordx4 v{vAo+g}, {srd(sX)}, 0 offen offset:{s*128} lds", "vm", f"A{g}_{s}")
        p = t.put(x, p, b - 1)
        t.put(Op(f"s_add_u32 m0, s33, {A_BASE + slot[k]*4096 - s*128}", "sc"), p - 1, (dma[-1] if dma else -999) + 1, back=True)
        dma.append(p)
        bop[b].need += (x.tag,)
        if i >= NS:
            og, os_ = chunks[i - NS]; lr = rpos[(2*og + 1, 2*os_ + 1)]
            cand = [q for q in bars if lr + P.lat <= q <= p]
            assert cand, ("slot reuse", k, lr, p)
            bop[cand[-1]].need += (f"fa{2*og+1}_{2*os_+1}",)
    for s in range(R):
        p = P.rpos[s]
        if s:
            q = p - 2
            while not (t.ok(Op("", "sc"), q) and t.ok(Op("", "sc"), q + 1)): q -= 1
            assert q > t.pos[f"R{s-1}_7"]
            t.put(Op(f"s_add_u32 s{sR}, s{sR}, {32*14336}", "sc"), q); t.put(Op(f"s_addc_u32 s{sR+1}, s{sR+1}, 0", "sc"), q + 1)
        for j in range(8):
            b = RAW[s & 1] + 4*j
            p = t.put(Op(f"buffer_load_dwordx4 v[{b}:{b+3}], v{vR}, {srd(sR)}, {'s%d' % (91+j) if j else 0} offen", "vm", f"R{s}_{j}"), p) + (P.rsep if p >= 0 else 1)
    qb = lambda s: QS[(s - R) % len(QS)]
    p = 10**9; need = {}; lastuse = {}; ti = 0; qlim = 10**9
    for s in range(31, -1, -1):
        p = min(p, first[s] - P.lat - 1)
        lo = last[s - RW] if s >= RW else t.lo
        q = qlim
        if s in P.burst:
            assert s < R
            b = RAW[s & 1]
            for jp in range(4):
                z = bub[s] + jp
                t.raw[z] = [Op(x, "x", None, [f"R{s}_{2*jp+1}"]) for x in or_ops(b)[2*jp:2*jp+2]] + \
                           [Op(f"v_lshl_add_u32 v{b+8*jp+c}, v{b+8*jp+c}, 8, v{vL}", "x") for c in range(4)] + \
                           [Op(f"ds_read_b32 a{16*(s % RW) + 4*c + jp}, v{b+8*jp+c}", "ds", f"L{s}_{c}_{jp}") for c in range(4)]
            need[s] = bub[s]; lastuse[s] = bub[s] + 3; p = min(p, bub[s] - 1)
            continue
        for c in range(3, -1, -1):
            for jp in range(3, -1, -1):
                tr = T + ti % NT; ti += 1
                p = t.put(Op(f"ds_read_b32 a{16*(s % RW) + 4*c + jp}, v{tr}", "ds", f"L{s}_{c}_{jp}"), p, lo, back=True)
                if s >= R: x = Op(f"v_perm_b32 v{tr}, v{qb(s) + 4*(jp >> 1) + (c >> 1)}, v{vL}, s{52 + 2*(c & 1) + (jp & 1)}", "va")
                else: x = Op(f"v_lshl_add_u32 v{tr}, v{RAW[s & 1] + 8*jp + c}, 8, v{vL}", "va")
                q = t.put(x, min(p - 1, q), p - NT + 2, back=True)
                lastuse.setdefault(s, q)
                p -= 1
        if s >= R:
            q = t.put(Op(f"s_cbranch_scc1 L_SLOW{s}\nL_BACK{s}:", "br"), q - 1, back=True)
            qq = q - 1; brpos = q
            while not t.ok(Op("", "sc"), qq):
                assert not t.sc.get(qq) or t.sc[qq][0].text == "s_barrier" or True
                qq -= 1
            for z in range(qq + 1, q):
                assert not [y for y in t.sc.get(z, []) if y.text != "s_barrier"], "scc"
            q = t.put(Op("s_or_b64 vcc, vcc, s[50:51]", "sc"), qq)
            q = t.put(Op(f"v_cmp_ne_u64 vcc, s[{sN}:{sN+1}], v[{qb(s)+6}:{qb(s)+7}]", "va", None, [f"Q{s}_1"]), q - 2, back=True)
            q = t.put(Op(f"v_cmp_ne_u64 s[50:51], s[{sN}:{sN+1}], v[{qb(s)+2}:{qb(s)+3}]", "va", None, [f"Q{s}_1"]), q, back=True)
        else:
            for i, x in reversed(list(enumerate(or_ops(RAW[s & 1])))):
                q = t.put(Op(x, "va", None, [f"R{s}_{2*(i//2)+1}"]), q, back=True)
        need[s] = q
    assert not R or brpos > lastuse[R - 1]
    for s in range(2, R): assert t.pos[f"R{s}_0"] > lastuse[s - 2]
    qpos = {}
    for s in range(R, 32):
        p = need[s] - (P.qlead0[s - R] if s - R < len(P.qlead0) else P.qlead)
        if s - R >= len(QS): p = max(p, lastuse[s - len(QS)] + 1)
        if qb(s) >= RAW[1]: p = max([p] + [lastuse[z] + 1 for z in range(R) if z & 1])
        if s > R: p = max(p, qpos[s-1] + 1)
        for g in range(2):
            x = Op(f"buffer_load_dwordx4 v[{qb(s)+4*g}:{qb(s)+4*g+3}], v{vQ}, {srd(sQ)}, 0 offen offset:{(s & 1)*2048 + g*1024} {P.lf}", "vm", f"Q{s}_{g}")
            p = t.put(x, p, need[s] - 1) + 1
        qpos[s] = p
        if s & 1 and s < 31: qpos[s] = t.put(Op(f"v_add_u32 v{vQ}, 4096, v{vQ}", "va"), p - 1)
    p = 100
    for h in range(2):
        p = t.put(Op(f"v_lshlrev_b32 v{SC+2*h}, 16, v{vSc+h}", "va", None, ["SC"]), p)
        p = t.put(Op(f"v_and_b32 v{SC+2*h+1}, 0xffff0000, v{vSc+h}", "va", None, ["SC"]), p)
    post = []; p = 0; ne = 0; inpost = False; prev = 0; pst = 0
    for m in range(8):
        for r in range(4):
            e = EP + 2 * (ne % 4); ne += 1
            row = 16*m + r
            adv = [f"s_add_u32 s{sO}, s{sO}, {(row - prev)*7168}", f"s_addc_u32 s{sO+1}, s{sO+1}, 0"] if row else []
            prev = row
            a_ = lambda c: ACC + (m*4 + c) * 4 + r
            cv = [f"v_cvt_pk_bf16_f32 v{e+h}, v{a_(2*h)}, v{a_(2*h+1)}" for h in range(2)]
            st = f"buffer_store_dwordx2 v[{e}:{e+1}], v{vO}, {srd(sO)}, 0 offen {P.store_flags}"
            p = max(p, glast[m] + 8)
            if r % 2 == 0 and p + 14 >= len(mf): inpost = True
            if not inpost:
                ps = max(p, pst + 1)
                for x in adv: ps = t.put(Op(x, "sc"), ps) + 1
                for c in range(4): p = t.put(Op(f"v_mul_f32 v{a_(c)}, v{a_(c)}, v{SC+c}", "va"), p)
                for x in cv: p = t.put(Op(x, "va"), p)
                p = pst = t.put(Op(st, "st"), max(p + 1, ps, st0 + 1))
            else:
                if r % 2 == 0:
                    for c in range(4):
                        sel = "op_sel:[0,1] op_sel_hi:[1,1]" if c & 1 else "op_sel:[0,0] op_sel_hi:[1,0]"
                        post.append(f"v_pk_mul_f32 v[{a_(c)}:{a_(c)+1}], v[{a_(c)}:{a_(c)+1}], v[{SC+(c&~1)}:{SC+(c&~1)+1}] {sel}")
                post += cv + adv + [st]
    return t, dict(post=post, qpos=qpos, need=need, st0=st0, qb=qb)

class NS_: pass
def gen(verbose=0, nopack=0, nomain=0, **kw):
    P = NS_()
    d = dict(diag=0, R=0, sf="sc1", df="sc1", nost=0, lf="sc1", budget=4096, lag=(0, 3, 7, 14), ramp0=6, RW=14, alead=8, lat=5, pb=64, tol=72, dsep=12,
             qlead=64, qlead0=(), store_flags="nt", rpos=(-150, -60, 2, 34), rsep=1, apos={0: -280}, npos=None, headcut=-200, burst=(), boff=8, S=8, waitst=1)
    d.update(kw); P.__dict__.update(d)
    R, diag = P.R, P.diag
    a = E(); nwg = 256
    def stamp(idx):
        r = []
        if diag:
            r.append(f"s_memrealtime s[{60+2*idx}:{61+2*idx}]")
            if idx in (1, 2): r.append(f"s_memtime s[{70+2*idx}:{71+2*idx}]")
        return r
    t, info = timeline(P)
    o = lambda s_: Op(s_, "x")
    a(*stamp(0))
    a("s_load_dwordx4 s[4:7], s[0:1], 0", "s_load_dwordx4 s[12:15], s[0:1], 40", "s_load_dwordx4 s[8:11], s[0:1], 24", "s_memrealtime s[56:57]")
    a(f"s_cmp_ge_u32 s2, {nwg}", "s_cbranch_scc1 L_END")
    a("s_getpc_b64 s[48:49]", "L_PC0:", "v_bfi_b32 v2, 7, v0, s2", "v_lshlrev_b32 v2, 7, v2", "v_min_u32 v2, L_END-L_PC0, v2", "global_load_dword v7, v2, s[48:49]")
    a("v_lshrrev_b32 v1, 6, v0", "s_cmp_lt_u32 s2, 32")
    a("v_readfirstlane_b32 s36, v1")
    a("s_cbranch_scc1 " + ("L_END" if nopack else "L_PACK"))
    if nomain: a("s_cmp_gt_u32 s2, 32", "s_cbranch_scc1 L_END")
    a("s_and_b32 s40, s2, 7", "s_lshr_b32 s41, s2, 3", "s_sub_u32 s41, s41, 4")
    a("s_and_b32 s43, s40, 1", "s_lshr_b32 s38, s41, 2", "s_mul_i32 s43, s43, 7", "s_add_u32 s38, s38, s43", "s_lshl2_add_u32 s39, s38, s36")
    a("v_bfe_u32 v6, v0, 4, 2", "v_and_b32 v3, 15, v0", f"v_mul_u32_u24 v2, {8*14336}, v6", f"v_lshl_add_u32 v{vR}, v3, 4, v2", "s_lshl_b32 s47, s39, 8")
    a(f"s_mov_b32 s{sR+2}, {31*14336+256}", f"s_mov_b32 s{sR+3}, 0x20000")
    for j in range(1, 8): a(f"s_mov_b32 s{91+j}, {j*14336}")
    a("s_sub_u32 s44, s2, 32", "s_mul_i32 s45, s44, 4682", "s_lshr_b32 s45, s45, 16", "s_mul_i32 s46, s45, 14", "s_sub_u32 s44, s44, s46", "s_lshl2_add_u32 s44, s44, s36")
    a("s_lshr_b32 s46, s45, 1", "s_and_b32 s34, s45, 1", "s_lshl3_add_u32 s46, s46, s34", f"s_mul_i32 s46, s46, {4*14336}", "s_lshl_b32 s34, s44, 8", "s_add_u32 s46, s46, s34")
    if R: a(f"s_add_u32 s46, s46, {R*32*14336}")
    if P.S < 8: a(f"s_cmp_lt_u32 s45, {2*P.S}", f"s_cselect_b32 s{sR+2}, s{sR+2}, 0")
    a("s_waitcnt lgkmcnt(0)")
    a(f"s_add_u32 s{sR}, s6, s46", f"s_addc_u32 s{sR+1}, s7, 0")
    aset = ["s_lshr_b32 s42, s40, 1", "s_and_b32 s37, s41, 3", "s_lshl2_add_u32 s37, s42, s37",
            f"s_mov_b64 s[{sX}:{sX+1}], s[4:5]", f"s_mov_b32 s{sX+2}, {M*K*2}", f"s_mov_b32 s{sX+3}, 0x20000",
            "s_lshl_b32 s46, s37, 18", "v_lshrrev_b32 v5, 3, v0", "v_lshl_add_u32 v2, v5, 11, s46", "v_lshrrev_b32 v4, 4, v0", "v_xor_b32 v4, v4, v0", "v_and_b32 v4, 7, v4",
            f"v_lshl_add_u32 v{vAo}, v4, 4, v2"] + [f"v_add_u32 v{vAo+g}, {g*65536}, v{vAo}" for g in range(1, 4)] + ["s_lshl_b32 s33, s36, 10"]
    early = []
    for g in range(t.lo, P.headcut):
        early += t.sc.get(g, []) + t.mem.get(g, []); assert not t.va.get(g)
        t.sc[g] = []; t.mem[g] = []
    nr = 0; H = RAW[1]
    head = [Op(f"buffer_load_dwordx4 v[{H+4*j}:{H+4*j+3}], v{vR}, {srd(sR)}, {'s%d' % (91+j) if j else 0} offen", "vm", f"H{j}") for j in range(4)]
    aset += ["s_lshl_b32 s44, s44, 6", "s_add_u32 s44, s44, s45", f"s_add_u32 s44, s44, {2*R}", "s_lshl_b32 s44, s44, 10",
             "s_add_u32 s76, s14, s44\ns_addc_u32 s77, s15, 0", f"s_min_u32 s78, s{sR+2}, 1024", "s_mov_b32 s79, 0x20000",
             f"s_add_u32 s{sR}, s6, s47\ns_addc_u32 s{sR+1}, s7, 0", f"s_mov_b32 s{sR+2}, {31*14336+256}"]
    if not nopack:
        h = E(); h("s_branch L_MAIN", "L_PACK:"); packer(h, P); h("L_MAIN:"); PK = h.text()
        head += [o("@PACKER@")]
    head += [o(x) for x in aset] + early[nr:]
    LT = ACC
    lb = [f"v_mov_b32 v2, {NF4[0] | NF4[8] << 16:#x}"]
    for j in range(1, 8): lb += ["s_lshl_b64 exec, exec, 8", f"v_mov_b32 v2, {NF4[j] | NF4[8+j] << 16:#x}"]
    lb += ["s_mov_b64 exec, -1",
           "s_and_b32 s45, s36, 1", "s_mul_i32 s45, s45, 0x0202", "s_lshr_b32 s46, s36, 1", "s_mul_i32 s46, s46, 0x02020000",
           "s_add_u32 s45, s45, s46", "s_add_u32 s45, s45, 0x05040100", "v_mov_b32 v4, s45",
           "v_lshlrev_b32 v5, 8, v5", "v_and_b32 v31, 7, v0", "v_lshl_add_u32 v31, v31, 4, v5"]
    head += [o(x) for x in lb]
    def lutv(j):
        q = LT + 4 * j
        return [o(f"s_mov_b32 s45, {NF4[2*j] | NF4[2*j+1] << 16:#x}"), o(f"v_perm_b32 v{q}, s45, v2, v4"), o(f"v_mov_b32 v{q+1}, v{q}"), o(f"v_mov_b64 v[{q+2}:{q+3}], v[{q}:{q+1}]")]
    pre = ["v_and_b32 v5, 31, v0", f"v_lshlrev_b32 v{vL}, 2, v5", "v_and_b32 v0, 63, v0",
           "s_lshl_b32 s46, s39, 7", "v_lshl_add_u32 v28, v3, 3, s46",
           f"s_mul_i32 s47, s37, {128*7168}", "s_add_u32 s47, s47, s46", f"s_add_u32 s{sO}, s10, s47\ns_addc_u32 s{sO+1}, s11, 0",
           f"s_mov_b32 s{sO+2}, {12*7168+128}", f"s_mov_b32 s{sO+3}, 0x20000",
           f"v_mul_u32_u24 v29, {4*7168}, v6", f"v_lshl_add_u32 v{vO}, v3, 3, v29",
           "v_lshlrev_b32 v29, 7, v3", "v_bfe_u32 v5, v0, 1, 3", "v_xor_b32 v5, v5, v6", "v_lshl_add_u32 v29, v5, 4, v29",
           f"v_add_u32 v{vA}, {A_BASE}, v29", f"v_xor_b32 v{vA+1}, 64, v{vA}", f"v_add_u32 v{vA+2}, 0x10000, v{vA}", f"v_add_u32 v{vA+3}, 0x10000, v{vA+1}",
           "s_mov_b32 s52, 0x0c0c0400", "s_mov_b32 s53, 0x0c0c0500", "s_mov_b32 s54, 0x0c0c0600", "s_mov_b32 s55, 0x0c0c0700",
           "v_lshlrev_b32 v13, 4, v0", f"v_add_u32 v{vQ}, {(R >> 1) * 4096}, v13", "s_lshl_b32 s47, s39, 16",
           f"s_add_u32 s{sQ}, s14, s47\ns_addc_u32 s{sQ+1}, s15, 0", f"s_mov_b32 s{sQ+2}, 65536", f"s_mov_b32 s{sQ+3}, 0x20000",
           f"s_mov_b64 s[{sD}:{sD+1}], s[12:13]", f"s_movk_i32 s{sD+2}, 128", f"s_mov_b32 s{sD+3}, 0x20000",
           f"s_movk_i32 s90, {P.budget}"]
    pre = [o(x) for x in pre]
    head += lutv(0)
    for j in range(8):
        head += [Op(f"ds_write_b128 v31, v[{LT+4*j}:{LT+4*j+3}] offset:{j*8192}", "ds", f"LW{j}")]
        if j < 7: head += lutv(j + 1)
        head += pre[4*j:4*j+4] if j < 7 else pre[28:]
    xs = [0]
    def xst():
        if diag != 4: return []
        xs[0] += 1
        XR = [16, 18, 70, 56, 58, 40, 42]
        return [o(f"s_memrealtime s[{XR[xs[0]-1]}:{XR[xs[0]-1]+1}]")]
    head += [Op("s_barrier", "x", None, ["LW7"]), o(f"s_load_dwordx2 s[{sN}:{sN+1}], s[12:13], 0")] + xst()
    ph = pack_half(H, H + 16)
    head += [Op(ph[0], "x", None, ["H3"])] + xst() + [o(x) for x in ph[1:]]
    head += [o("s_waitcnt lgkmcnt(0)")] + xst() + [o(f"s_cmp_eq_u64 s[{sN}:{sN+1}], 0"), o("s_cbranch_scc1 L_NOTAG\nL_TAGOK:"), o(f"v_mov_b64 v[{H+18}:{H+19}], s[{sN}:{sN+1}]"),
             Op(f"buffer_store_dwordx4 v[{H+16}:{H+19}], v13, s[76:79], 0 offen {P.df}", "vm", "HS")] + xst()
    if P.waitst: t.mem[t.pos[f"Q{R}_0"]][-1].need += ("HS",)
    if diag == 4:
        t.raw[t.pos[f"Q{R}_0"]] = xst(); t.raw[info["need"][R]] = xst(); t.raw[-13] = xst()
    t.put(Op(f"global_load_dwordx2 v[{vSc}:{vSc+1}], v28, s[8:9]", "vm", "SC"), 30)
    if diag:
        t.va.setdefault(-1, []).extend(o(x) for x in stamp(1))
        if diag == 2:
            for i in range(16):
                q = t.put(Op("s_memtime s[58:59]", "sc"), 64*i + 1)
                t.va.setdefault(q + 12, []).append(o(f"v_writelane_b32 v1, s58, {15-i}"))
        if diag == 3:
            head += [o("s_memrealtime s[58:59]"), o("s_waitcnt lgkmcnt(0)"), o("v_writelane_b32 v1, s58, 24")]
            for i in range(7):
                q = t.put(Op("s_memrealtime s[58:59]", "sc"), 32*i + 1)
                t.va.setdefault(q + 12, []).append(o(f"v_writelane_b32 v1, s58, {25+i}"))
    body = t.emit(lat=P.lat, vlat=10**6, head=head)
    b2 = []
    for x in body:
        if x.endswith("lds") and " m0," in b2[-1]: b2.append("s_nop 0")
        b2.append(x)
    scc_check([x.replace("s_or_b64", "s_cmp_or") for x in b2] + info["post"])
    if verbose: print(t.stats, "st0", info["st0"], "post", len(info["post"]), "need", info["need"], "qpos", info["qpos"], file=sys.stderr)
    a(*[PK if x == "@PACKER@" else x for x in b2]); a(*stamp(2)); a("s_nop 7"); a(*info["post"])
    if diag:
        a(*stamp(3)); a("s_waitcnt vmcnt(0)"); a(*stamp(4))
        a("s_waitcnt lgkmcnt(0)")
        for i in range(5): a(f"v_writelane_b32 v1, s{60+2*i}, {16+i}")
        if diag == 4:
            for i, r in enumerate([16, 18, 70, 56, 58, 40, 42]): a(f"v_writelane_b32 v1, s{r}, {24+i}")
        a("v_writelane_b32 v1, s72, 21", "v_writelane_b32 v1, s74, 22", "v_writelane_b32 v1, s90, 51")
        a("s_getreg_b32 s58, hwreg(HW_REG_XCC_ID)", "s_nop 3", "v_writelane_b32 v1, s58, 23")
        a("s_lshl_b32 s58, s2, 2", "s_add_u32 s58, s58, s36", "s_lshl_b32 s58, s58, 8", f"s_add_u32 s58, s58, {DOFF}")
        a("v_lshl_add_u32 v61, v0, 2, s58", "global_store_dword v61, v1, s[14:15]", "s_waitcnt vmcnt(0)")
    a("s_endpgm")
    a("L_NOTAG:", f"buffer_load_dwordx2 v[{vN}:{vN+1}], off, {srd(sD)}, 0 {P.lf}", "s_waitcnt vmcnt(0)",
      f"v_readfirstlane_b32 s{sN}, v{vN}", f"v_readfirstlane_b32 s{sN+1}, v{vN+1}", "s_sub_u32 s90, s90, 1", "s_nop 0",
      f"s_cmp_eq_u64 s[{sN}:{sN+1}], 0", "s_cbranch_scc0 L_TAGOK", "s_cmp_gt_i32 s90, 0", "s_cbranch_scc1 L_NOTAG",
      f"s_mov_b32 s{sQ+2}, 0", "s_mov_b32 s78, 0", f"s_mov_b64 s[{sN}:{sN+1}], 1", "s_branch L_TAGOK")
    for s in range(R, 32):
        q = info["qb"](s)
        a(f"L_SLOW{s}:", f"s_movk_i32 s91, {s}", "s_call_b64 s[100:101], L_WAIT", f"v_mov_b64 v[{q}:{q+1}], v[{TMP}:{TMP+1}]", f"v_mov_b64 v[{q+4}:{q+5}], v[{TMP+4}:{TMP+5}]", f"s_branch L_BACK{s}")
    a("L_WAIT:", "s_lshl_b32 s47, s91, 11")
    for g in range(2): a(f"buffer_load_dwordx4 v[{TMP+4*g}:{TMP+4*g+3}], v13, {srd(sQ)}, s47 offen offset:{g*1024} {P.lf}")
    a("s_waitcnt vmcnt(0)", f"v_cmp_ne_u64 s[50:51], s[{sN}:{sN+1}], v[{TMP+2}:{TMP+3}]", f"v_cmp_ne_u64 vcc, s[{sN}:{sN+1}], v[{TMP+6}:{TMP+7}]",
      "s_sub_u32 s90, s90, 1", "s_nop 0", "s_or_b64 vcc, vcc, s[50:51]", "s_cbranch_scc0 L_WRET", "s_cmp_gt_i32 s90, 0", "s_cbranch_scc1 L_WAIT")
    a(f"s_mul_i32 s47, s91, {32*14336}", "s_lshl_b32 s46, s39, 8", "s_add_u32 s47, s47, s46", f"s_add_u32 s{sR}, s6, s47", f"s_addc_u32 s{sR+1}, s7, 0")
    for j in range(8): a(f"buffer_load_dwordx4 v[{RAW[0]+4*j}:{RAW[0]+4*j+3}], v{vR}, {srd(sR)}, {'s%d' % (91+j) if j else 0} offen")
    a("s_waitcnt vmcnt(0)")
    a(*pack_ops(RAW[0], TMP))
    a("L_WRET:", "s_setpc_b64 s[100:101]")
    a("L_END:")
    return dict(label=NAME+"_kernel", body=a.text(), grid=nwg, block=256, lds=LDS, vgpr=512, accum=256)

if __name__ == "__main__":
    kw = eval("dict(" + (sys.argv[2] if len(sys.argv) > 2 else "") + ")")
    open(sys.argv[1], "w").write(file_text([gen(**kw)]))
```

```python
NAME = "standalone__normalfloat_lut_af4__prompt"
HEADER = """; Kernarg layout for this problem (56 bytes, ptrs only, base s[0:1]):
"""
def kernel_text(label, body):
    al = ".p2align 12\n" if "L_STREAM" in body else ""
    return f""".globl {label}
{al}.p2align 8
.type {label},@function
{label}:
{body}
s_endpgm
"""
def kd(label, vgpr, accum, sgpr=102, extra=""):
    return f""".p2align 6
.amdhsa_kernel {label}
  .amdhsa_next_free_vgpr {vgpr}
  .amdhsa_next_free_sgpr {sgpr}
  .amdhsa_accum_offset {accum}
  .amdhsa_group_segment_fixed_size 0
  .amdhsa_kernarg_size 56
  .amdhsa_user_sgpr_count 2
  .amdhsa_user_sgpr_kernarg_segment_ptr 1
  .amdhsa_system_sgpr_workgroup_id_x 1
{extra}.end_amdhsa_kernel
"""
def file_text(kernels, single=True):
    s = HEADER
    for k in kernels:
        kn = "" if single else f"kernel={k['label']} "
        s += f"; @launch {kn}grid=({k['grid']},1,1) block=({k['block']},1,1) lds={k['lds']}\n"
    s += "".join(k.get("doc", "") for k in kernels)
    s += '.amdgcn_target "amdgcn-amd-amdhsa--gfx950"\n.text\n'
    seen = []
    for k in kernels:
        if k['label'] in seen: continue
        seen.append(k['label']); s += kernel_text(k['label'], k['body'])
    s += '.section .rodata,"a"\n'
    seen = []
    for k in kernels:
        if k['label'] in seen: continue
        seen.append(k['label']); s += kd(k['label'], k['vgpr'], k['accum'], k.get('sgpr', 102), k.get('extra', ""))
    return s
```
